```python
import torch

def _softmax(x, axis=-1):
    return torch.softmax(x, dim=axis)
def _gelu(x):
    return torch.nn.functional.gelu(x, approximate="tanh")
def _silu(x):
    return torch.nn.functional.silu(x)
def _sigmoid(x):
    return torch.sigmoid(x)
def _layernorm(x, axis=-1, eps=1e-5):
    m = x.mean(dim=axis, keepdim=True)
    v = x.var(dim=axis, keepdim=True, unbiased=False)
    return (x - m) / torch.sqrt(v + eps)
def _scatter_add(tgt, idx, src, axis=0):
    return tgt.clone().index_add_(axis, idx, src)
def _segment_sum(src, seg, n):
    out = torch.zeros((n,) + src.shape[1:], dtype=src.dtype)
    return out.index_add_(0, seg, src)
def _pad(x, pw):
    flat = tuple(v for pair in reversed(pw) for v in pair)
    return torch.nn.functional.pad(x, flat)

kernel_name = 'gated_mix__linear_kernel_hedgehog__dense_activation_mish__prompt'

def setup_inputs():

    _w = (lambda a: (lambda t: t.to(torch.bfloat16) if t.is_floating_point() else t)(torch.as_tensor(a)))
    def _A_setup():
        B, S, D, H = 1, 2048, 1024, 32
        Dh = D // H
        return {
            "x": _w((lambda *s: torch.randn(*s, dtype=torch.bfloat16) * 0.05)(B, S, D)),
            "wqkv": _w((lambda *s: torch.randn(*s, dtype=torch.bfloat16) * 0.8)(D, 3 * D)),
            "w_phi": _w((lambda *s: torch.randn(*s, dtype=torch.bfloat16) * 0.8)(H, Dh, Dh) * (Dh ** -0.5)),
            "wo": _w((lambda *s: torch.randn(*s, dtype=torch.bfloat16) * 0.05)(D, D)),
        }
    _A_in = _A_setup()

    def _B_setup():
        B, S, D, F = 1, 2048, 1024, 3584
        return {
            "x": _w((lambda *s: torch.randn(*s, dtype=torch.bfloat16) * 0.05)(B, S, D)),
            "w1": _w((lambda *s: torch.randn(*s, dtype=torch.bfloat16) * 12.8)(D, F) * (D ** -0.5)),
            "b1": _w((lambda *s: torch.randn(*s, dtype=torch.bfloat16) * 0.2)(F)),
            "w2": _w((lambda *s: torch.randn(*s, dtype=torch.bfloat16) * 0.1)(F, D) * (F ** -0.5)),
        }
    _B_in = _B_setup()

    return {
        "A_x": _A_in["x"],
        "A_wqkv": _A_in["wqkv"],
        "A_w_phi": _A_in["w_phi"],
        "A_wo": _A_in["wo"],
        "B_x": _B_in["x"],
        "B_w1": _B_in["w1"],
        "B_b1": _B_in["b1"],
        "B_w2": _B_in["w2"],
        "gate_w": _w((lambda *s: torch.randn(*s, dtype=torch.bfloat16) * 0.05)(1024) * 16.0),
    }

def reference(A_x, A_wqkv, A_w_phi, A_wo, B_x, B_w1, B_b1, B_w2, gate_w):
    def _A_ref(x, wqkv, w_phi, wo):
        B, S, D = x.shape
        H = 32; Dh = D // H
        qkv = (lambda x, *d: x.permute(*d))((x @ wqkv).reshape(B, S, 3, H, Dh), 2, 0, 3, 1, 4)
        q, k, v = qkv[0], qkv[1], qkv[2]
        pq = torch.einsum("bhsd,hdf->bhsf", q, w_phi)
        pk = torch.einsum("bhsd,hdf->bhsf", k, w_phi)
        phi_q = torch.concatenate([_softmax(pq, axis=-1), _softmax(-pq, axis=-1)], axis=-1)
        phi_k = torch.concatenate([_softmax(pk, axis=-1), _softmax(-pk, axis=-1)], axis=-1)
        kv = torch.einsum("bhsf,bhsd->bhfd", phi_k, v)
        z  = torch.einsum("bhsf->bhf", phi_k)
        num = torch.einsum("bhqf,bhfd->bhqd", phi_q, kv)
        den = torch.einsum("bhqf,bhf->bhq", phi_q, z)[..., None] + 1e-6
        o = num / den
        return (lambda x, *d: x.permute(*d))(o, 0, 2, 1, 3).reshape(B, S, D) @ wo

    def _B_ref(x, w1, b1, w2):
        h = torch.einsum("bsd,df->bsf", x, w1) + b1
        sp = torch.log1p(torch.exp(-torch.abs(h))) + torch.where(h > 0, h, torch.zeros_like(h))
        act = h * torch.tanh(sp)
        return torch.einsum("bsf,fd->bsd", act, w2)

    x = A_x
    g = _sigmoid((x * gate_w).sum(-1, keepdims=True))
    a = _A_ref(x, A_wqkv, A_w_phi, A_wo)
    b = _B_ref(x, B_w1, B_b1, B_w2)
    return g * a + (1 - g) * b
```

```python
import re

TRANS = ("v_exp_f32", "v_log_f32", "v_rcp_f32", "v_rsq_f32", "v_sqrt_f32", "v_sin_f32", "v_cos_f32")
REG_RE = re.compile(r"^-?\|?(?:abs\()?([vas])(?:(\d+)|\[(\d+):(\d+)\])\)?\|?$")

def regs_of(op):
    op = op.strip()
    if op == "vcc": return {("s", "vcc")}
    if op == "exec": return {("s", "exec")}
    if op == "m0": return {("s", "m0")}
    m = REG_RE.match(op)
    if not m: return set()
    k = m.group(1)
    if m.group(2) is not None: return {(k, int(m.group(2)))}
    return {(k, i) for i in range(int(m.group(3)), int(m.group(4)) + 1)}

class Ins:
    __slots__ = ("text", "op", "kind", "w", "r", "ra", "rc", "passes", "states", "data", "dpp")
    def __init__(self, text):
        self.text = text
        t = text.split(";")[0].strip()
        self.w = set(); self.r = set(); self.ra = set(); self.rc = set(); self.passes = 0; self.states = 1; self.data = set(); self.dpp = False
        if not t or t.endswith(":") or t.startswith("."):
            self.op = ""; self.kind = "none"; self.states = 0; return
        parts = t.split(None, 1)
        op = self.op = parts[0]
        rest = parts[1] if len(parts) > 1 else ""
        ops = []; cur = ""; d = 0
        for ch in rest:
            if ch == "[": d += 1
            if ch == "]": d -= 1
            if ch == "," and d == 0: ops.append(cur.strip()); cur = ""
            else: cur += ch
        if cur.strip(): ops.append(cur.strip())
        mods = ""
        if ops:
            last = ops[-1].split(None, 1)
            ops[-1] = last[0]
            if len(last) > 1: mods = last[1]
        R = [regs_of(o) for o in ops]
        U = lambda l: set().union(*l) if l else set()
        if op == "s_nop":
            self.kind = "nop"; self.states = int(ops[0]) + 1
        elif op.startswith("v_mfma"):
            self.kind = "mfma"; self.w = R[0]; self.ra = R[1] | R[2]; self.rc = R[3]; self.r = self.ra | self.rc
            self.passes = 4 if "16x16" in op else 8
        elif op.startswith("v_"):
            self.kind = "valu"
            if op.startswith("v_permlane") and "swap" in op: self.w = R[0] | R[1]; self.r = R[0] | R[1]
            elif op.startswith(("v_fmac", "v_dot2c")): self.w = R[0]; self.r = U(R)
            elif op.startswith(("v_add_co", "v_sub_co", "v_addc_co")): self.w = R[0] | R[1]; self.r = U(R[2:])
            else: self.w = R[0]; self.r = U(R[1:])
            if "_dpp" in op or "row_" in mods or "quad_perm" in mods:
                self.dpp = True; self.r |= R[0]
            if op.startswith("v_cndmask") and len(ops) == 3: self.r |= {("s", "vcc")}
        elif op.startswith("ds_"):
            self.kind = "ds"
            if op.startswith(("ds_read", "ds_bpermute", "ds_permute", "ds_swizzle")): self.w = R[0]; self.r = U(R[1:])
            else: self.r = U(R)
        elif op.startswith(("buffer_", "global_")):
            self.kind = "vmem"
            lds = bool(re.search(r"\blds\b", mods)) or "load_lds" in op
            if lds: self.r = U(R) | {("s", "m0")}
            elif "_load" in op: self.w = R[0]; self.r = U(R[1:])
            elif "atomic" in op and "sc0" in mods:
                self.r = U(R); self.w = R[0]
            else:
                self.r = U(R)
                if op.endswith(("x3", "x4")):
                    self.data = R[0] if op.startswith("buffer_") else R[1]
        elif op.startswith("s_"):
            self.kind = "salu"
            if op.startswith(("s_cmp", "s_waitcnt", "s_barrier", "s_cbranch", "s_branch", "s_endpgm", "s_sleep", "s_setprio")): self.r = U(R)
            else:
                self.w = R[0] if R else set(); self.r = U(R[1:])
                if "saveexec" in op: self.w |= {("s", "exec")}
        else:
            raise ValueError("unknown instruction: " + text)

def need(p, c):
    n = 0
    vw = {x for x in p.w if x[0] in "va"}
    sw = {x for x in p.w if x[0] == "s"}
    if p.kind == "valu":
        if c.kind == "mfma" and vw & c.r: n = max(n, 2)
        if c.kind == "valu":
            if vw & c.r:
                if p.op.startswith(TRANS) and not c.op.startswith(TRANS): n = max(n, 1)
                if c.op.startswith("v_permlane"): n = max(n, 2)
                if c.op.startswith(("v_readlane", "v_readfirstlane")): n = max(n, 1)
                if c.dpp: n = max(n, 2)
            if p.op.startswith("v_dot") and (vw & (c.r | c.w)):
                if not (c.op == p.op and c.w == p.w): n = max(n, 3)
            if sw & c.r: n = max(n, 4 if c.op.startswith(("v_readlane", "v_writelane")) else 2)
        if c.kind in ("vmem", "ds") and p.op.startswith(TRANS) and vw & c.r: n = max(n, 1)
        if c.kind in ("vmem", "ds") and p.op.startswith("v_dot") and vw & c.r: n = max(n, 3)
        if c.kind == "vmem" and sw & c.r: n = max(n, 5)
        if c.kind == "salu" and sw & c.r: n = max(n, 1)
    if p.kind == "mfma":
        big = {4: 8, 8: 12}[p.passes]
        if c.kind in ("valu", "ds", "vmem") and (p.w & (c.r | c.w)): n = max(n, big)
        if c.kind == "mfma":
            if p.w & c.ra: n = max(n, big)
            if p.w & c.rc and not (p.w == c.rc and p.passes == c.passes): n = max(n, {4: 6, 8: 10}[p.passes])
            if p.w & c.w and not (p.w == c.w and p.passes == c.passes): n = max(n, big)
        if c.kind == "valu" and (p.rc & c.w): n = max(n, {4: 3, 8: 7}[p.passes])
    if p.kind == "vmem" and p.data and (p.data & c.w): n = max(n, 2)
    if p.kind == "salu" and ("s", "m0") in sw and c.kind == "vmem" and ("s", "m0") in c.r: n = max(n, 1)
    return n

class Asm:
    def __init__(self):
        self.ins = []
    def __call__(self, text):
        for l in text.split("\n"):
            l = l.strip()
            if l: self.ins.append(Ins(l))
    def extend(self, lines):
        for l in lines: self(l)
    def padded(self, verbose=False):
        out = []; nops = 0
        for c in self.ins:
            if c.kind not in ("none", "nop"):
                dist = 0; req = 0
                for p in reversed(out):
                    if dist >= 12: break
                    if p.kind not in ("none", "nop"):
                        req = max(req, need(p, c) - dist)
                    dist += p.states
                if req > 0:
                    out.append(Ins("s_nop %d" % (req - 1))); nops += req
            out.append(c)
        if verbose: print("padding states inserted:", nops)
        return out
    def text(self, verbose=False):
        o = []
        for i in self.padded(verbose):
            o.append(i.text if i.kind == "none" else "    " + i.text)
        return "\n".join(o) + "\n"

def interleave(main, fill, start=0, every=1, per=1):
    out = []; f = list(fill)
    for i, m in enumerate(main):
        out.append(m)
        if i >= start and (i - start) % every == 0:
            for _ in range(per):
                if f: out.append(f.pop(0))
    out.extend(f)
    return out

def place(main, items):
    d = {}
    for pos, t in items: d.setdefault(min(pos, len(main) - 1), []).append(t)
    out = list(d.get(-1, []))
    for i, m in enumerate(main):
        out.append(m); out.extend(d.get(i, []))
    return out

def zipmerge(*streams):
    out = []; n = max(len(s) for s in streams)
    for i in range(n):
        for s in streams:
            if i < len(s): out.append(s[i])
    return out

def vr(b, n=1, k="v"):
    return "%s%d" % (k, b) if n == 1 else "%s[%d:%d]" % (k, b, b + n - 1)
def ar(b, n=1): return vr(b, n, "a")
def sr(b, n=1): return vr(b, n, "s")

def kdesc(name, vgpr, accum, sgpr=102):
    return f""".amdhsa_kernel {name}
  .amdhsa_next_free_vgpr {vgpr}
  .amdhsa_next_free_sgpr {sgpr}
  .amdhsa_accum_offset {accum}
  .amdhsa_group_segment_fixed_size 0
  .amdhsa_kernarg_size 96
  .amdhsa_user_sgpr_count 2
  .amdhsa_user_sgpr_kernarg_segment_ptr 1
  .amdhsa_system_sgpr_workgroup_id_x 1
.end_amdhsa_kernel
"""
```

```python
from asmlib import *

A2_OFF = 0
G_OFF = 0x1200000
KVP_OFF = 0x1210000
ZP_OFF = 0x1410000
ST_OFF = 0x1500000
WS_USED = 0x1600000
RT_STRIDE = 144 * 1024

XB = 0
WB = 98304
PHI = 155648
LDS1 = 163840

S_X, S_W, S_WS, S_M, S_M2 = 4, 8, 12, 16, 20
S_DBG = 24
sRB, sCB, sWV, sWM, sWN = 26, 27, 28, 29, 30
sX, sX2, sW = 31, 32, 33
sCur, sPrev, sDx, sWb, sDw, sCnt = 34, 35, 36, 37, 38, 39
sWX0, sWX1, sWW0, sWW1 = 40, 41, 42, 43
sT0, sT1, sT2 = 44, 45, 46
sC0, sC1 = 48, 50
sNew = 47
sEx = 52
sST = 56
vXd = 2
vWd = 6
vXr = 13
vWr = 15
vT = 18

def srd(a, d, lo, size):
    a("s_mov_b32 s%d, s%d\ns_mov_b32 s%d, s%d\ns_mov_b32 s%d, 0x%x\ns_mov_b32 s%d, 0x20000" % (d, lo, d + 1, lo + 1, d + 2, size, d + 3))

class K1:
    def __init__(self, name, stamps=False, opt=None):
        self.name = name; self.stamps = stamps; self.a = Asm(); self.opt = opt or {}
    def stamp(self, k):
        if self.stamps: self.a("s_memtime s[%d:%d]" % (sST + 2 * k, sST + 2 * k + 1))
    def dump_stamps(self, n):
        if not self.stamps: return
        a = self.a
        a("s_memrealtime s[%d:%d]" % (sST + 2 * n, sST + 2 * n + 1))
        a("s_waitcnt lgkmcnt(0)")
        a("s_lshl_b32 s%d, s2, 2\ns_add_u32 s%d, s%d, s%d\ns_lshl_b32 s%d, s%d, 6\ns_add_u32 s%d, s%d, 0x%x" % (sT0, sT0, sT0, sWV, sT0, sT0, sT0, sT0, ST_OFF))
        a("v_mov_b32 v1, 0")
        for k in range(n + 1):
            a("v_mov_b32 v2, s%d" % (sST + 2 * k))
            a("buffer_store_dword v2, v1, s[%d:%d], s%d offen offset:%d" % (S_WS, S_WS + 3, sT0, 4 * k))
        a("v_mov_b32 v2, s80")
        a("buffer_store_dword v2, v1, s[%d:%d], s%d offen offset:%d" % (S_WS, S_WS + 3, sT0, 60))

    def dma_x(self):
        L = []
        for q in range(8):
            pre = ""
            if q % 4 == 0: pre = "s_add_u32 m0, s%d, s%d\n" % (sPrev, sWX0 if q == 0 else sWX1)
            L.append((pre, "buffer_load_dwordx4 v%d, s[%d:%d], s%d offen offset:%d lds" % (vXd + q % 4, S_X, S_X + 3, sX if q < 4 else sX2, (q % 4) * 1024)))
        return L
    def dma_w(self, n):
        L = []
        for m in range(n):
            pre = ""
            if m % 4 == 0: pre = "s_add_u32 m0, s%d, s%d\n" % (sWb, sWW0 if m == 0 else sWW1)
            L.append((pre, "buffer_load_dwordx4 v%d, s[%d:%d], s%d offen offset:%d lds" % (vWd + m, S_W, S_W + 3, sW, (m % 4) * 1024)))
        return L
    def reads(self, ffn, kk, st):
        xb = 64 * st; wb = 64 * st + 32
        pitch = 448 if ffn else 384
        X = ["ds_read_b128 %s, v%d offset:%d" % (ar(xb + 4 * i, 4), vXr + kk, i * 2048) for i in range(8)]
        W = []
        for j in range(7 if ffn else 6):
            if ffn:
                base = vWr + (2 if j == 6 else j & 1); off = 0 if j == 6 else 32 * j
            else:
                base = vWr + (j & 1); off = 128 * (j >> 1)
            for h in range(2):
                W.append("ds_read_b64_tr_b16 %s, v%d offset:%d" % (ar(wb + 4 * j + 2 * h, 2), base, off + (4 * h + 32 * kk) * pitch))
        return W[:2] + X + W[2:]
    def acc(self, ffn, i, j):
        return 32 + (i * 7 + j) * 4 if ffn else 64 + (i * 6 + j) * 4
    def mfmas(self, ffn, st):
        xb = 64 * st; wb = 64 * st + 32
        L = []
        for j in range(7 if ffn else 6):
            for i in range(8):
                d = vr(self.acc(ffn, i, j), 4); x = ar(xb + 4 * i, 4); w = ar(wb + 4 * j, 4)
                if ffn or j < 4: L.append("v_mfma_f32_16x16x32_bf16 %s, %s, %s, %s" % (d, w, x, d))
                else: L.append("v_mfma_f32_16x16x32_bf16 %s, %s, %s, %s" % (d, x, w, d))
        return L
    def step(self, ffn, dma=True, last=False, vm=8):
        a = self.a
        nw = 7 if ffn else 6
        pitch = 448 if ffn else 384
        rstride = 7168 if ffn else 6144
        nwr = 3 if ffn else 2
        d0 = self.opt.get("dma_start", 1); de = self.opt.get("dma_every", 6 if ffn else 5)
        items = [(2 * n, t) for n, t in enumerate(self.reads(ffn, 1, 1))]
        if dma:
            for n, (pre, t) in enumerate(self.dma_x()):
                if pre: items.append((d0 + de * n - 1, pre))
                items.append((d0 + de * n, t))
            e = d0 + de * 7 + 1
            items += [(e, "s_add_u32 s%d, s%d, 128" % (sX, sX)), (e + 1, "s_add_u32 s%d, s%d, 128" % (sX2, sX2))]
        if not last:
            items += [(3, "s_add_u32 s%d, s%d, 0x8000" % (sNew, sCur)), (3, "s_cmp_eq_u32 s%d, 0x18000" % sNew), (3, "s_cselect_b32 s%d, 0, s%d" % (sNew, sNew)),
                      (5, "s_sub_u32 s%d, s%d, s%d" % (sDx, sNew, sCur)), (9, "v_add_u32 v%d, s%d, v%d" % (vXr, sDx, vXr))]
            n0 = 8 * nw - 4
            for k in range(nwr): items.append((n0 + k, "v_add_u32 v%d, s%d, v%d" % (vWr + k, sDw, vWr + k)))
        a.extend(place(self.mfmas(ffn, 0), items))
        if last: a("s_waitcnt lgkmcnt(0)")
        else: a("s_waitcnt vmcnt(%d) lgkmcnt(0)" % vm)
        a("s_barrier")
        items = []
        if not last:
            items = [(2 * n, t) for n, t in enumerate(self.reads(ffn, 0, 0))]
            items += [(9, "v_add_u32 v%d, s%d, v%d" % (vXr + 1, sDx, vXr + 1)), (11, "s_mov_b32 s%d, s%d" % (sPrev, sCur)), (11, "s_mov_b32 s%d, s%d" % (sCur, sNew))]
        if dma:
            for n, (pre, t) in enumerate(self.dma_w(nw)):
                if pre: items.append((d0 + de * n - 1, pre))
                items.append((d0 + de * n, t))
            e = d0 + de * (nw - 1) + 1
            items += [(e, "s_add_u32 s%d, s%d, %d" % (sW, sW, 64 * rstride))]
        if not last:
            e = 8 * nw - 5
            items += [(e, "s_add_u32 s%d, s%d, s%d" % (sWb, sWb, sDw)), (e + 1, "s_sub_u32 s%d, 0, s%d" % (sDw, sDw))]
        if dma:
            items += [(8 * nw - 3, "s_add_u32 s%d, s%d, 1" % (sCnt, sCnt)), (8 * nw - 2, "s_cmp_lt_u32 s%d, 14" % sCnt)]
        a.extend(place(self.mfmas(ffn, 1), items))
        if not last: a("s_waitcnt lgkmcnt(0)")
    def mainloop(self, ffn):
        a = self.a; tag = "F" if ffn else "Q"
        nw = 7 if ffn else 6
        a("s_waitcnt vmcnt(%d)" % (8 + nw))
        a("s_barrier")
        self.stamp(1)
        a.extend(self.reads(ffn, 0, 0))
        a("s_waitcnt lgkmcnt(0)")
        a(".p2align 6")
        a("L_k1_loop%s:" % tag)
        self.step(ffn)
        a("s_cbranch_scc1 L_k1_loop%s" % tag)
        self.step(ffn, dma=False, vm=0)
        self.step(ffn, dma=False, last=True)
        self.stamp(2)
    def first_dmas(self, ffn):
        a = self.a
        nw = 7 if ffn else 6; pitch = 448 if ffn else 384; rstride = 7168 if ffn else 6144
        a("s_mov_b32 s%d, 0\ns_mov_b32 s%d, 0x10000\ns_mov_b32 s%d, 0" % (sX, sX2, sW))
        a("s_mov_b32 s%d, 0\ns_mov_b32 s%d, %d" % (sPrev, sWb, WB))
        for t in range(2):
            for pre, x in self.dma_x(): a(pre + x)
            for pre, x in self.dma_w(nw): a(pre + x)
            a("s_add_u32 s%d, s%d, 128\ns_add_u32 s%d, s%d, 128\ns_add_u32 s%d, s%d, %d" % (sX, sX, sX2, sX2, sW, sW, 64 * rstride))
            if t == 0: a("s_mov_b32 s%d, 0x8000\ns_mov_b32 s%d, %d" % (sPrev, sWb, WB + 64 * pitch))
        a("s_mov_b32 s%d, 0x10000\ns_mov_b32 s%d, 0\ns_mov_b32 s%d, %d\ns_mov_b32 s%d, %d\ns_mov_b32 s%d, 0" % (sPrev, sCur, sWb, WB, sDw, 64 * pitch, sCnt))
    def addr_setup(self, ffn):
        a = self.a
        nw = 7 if ffn else 6; pitch = 448 if ffn else 384; rstride = 7168 if ffn else 6144
        nch = 28 if ffn else 24; magic = 2341 if ffn else 2731
        t0, t1, t2, t3, t4 = vT, vT + 1, vT + 2, vT + 3, vT + 4
        a("s_mul_i32 s%d, s%d, %d" % (sT0, sWV, 16 * rstride))
        a("s_mul_i32 s%d, s%d, %d" % (sT1, sCB, 448 if ffn else 128))
        a("s_add_u32 s%d, s%d, s%d" % (sT0, sT0, sT1))
        for m in range(nw):
            a("v_add_u32 v%d, %d, v1" % (t0, 64 * m))
            a("v_mul_u32_u24 v%d, %d, v%d" % (t1, magic, t0))
            a("v_lshrrev_b32 v%d, 16, v%d" % (t1, t1))
            a("v_mul_u32_u24 v%d, %d, v%d" % (t2, nch, t1))
            a("v_sub_u32 v%d, v%d, v%d" % (t0, t0, t2))
            if ffn:
                a("v_lshrrev_b32 v%d, 2, v%d\nv_and_b32 v%d, 2, v%d" % (t2, t1, t2, t2))
                a("v_xor_b32 v%d, v%d, v%d" % (t0, t0, t2))
                a("v_lshlrev_b32 v%d, 4, v%d" % (t0, t0))
            else:
                a("v_lshrrev_b32 v%d, 1, v%d\nv_and_b32 v%d, 4, v%d" % (t2, t1, t2, t2))
                a("v_and_b32 v%d, 2, v%d" % (t3, t1))
                a("v_or_b32 v%d, v%d, v%d" % (t2, t2, t3))
                a("v_xor_b32 v%d, v%d, v%d" % (t0, t0, t2))
                a("v_lshrrev_b32 v%d, 3, v%d\nv_lshlrev_b32 v%d, 11, v%d" % (t2, t0, t2, t2))
                a("v_and_b32 v%d, 7, v%d" % (t0, t0))
                a("v_lshl_add_u32 v%d, v%d, 4, v%d" % (t0, t0, t2))
            a("v_mul_u32_u24 v%d, %d, v%d" % (t1, rstride, t1))
            a("v_add3_u32 v%d, v%d, v%d, s%d" % (vWd + m, t0, t1, sT0))
            if m % 4: a("v_subrev_u32 v%d, %d, v%d" % (vWd + m, (m % 4) * 1024, vWd + m))
        a("s_mul_i32 s%d, s%d, %d\ns_add_u32 s%d, s%d, 4096" % (sWW0, sWV, 16 * pitch, sWW1, sWW0))
    def addr_reads(self, ffn):
        a = self.a
        pitch = 448 if ffn else 384
        t0, t1, t2, t3, t4 = vT, vT + 1, vT + 2, vT + 3, vT + 4
        a("v_and_b32 v%d, 15, v1\nv_lshrrev_b32 v%d, 4, v1" % (t0, t1))
        a("v_lshrrev_b32 v%d, 1, v%d\nv_xor_b32 v%d, v%d, v%d" % (t2, t0, t2, t2, t1))
        a("v_lshlrev_b32 v%d, 4, v%d\nv_lshl_add_u32 v%d, v%d, 7, v%d" % (t2, t2, t2, t0, t2))
        a("s_lshl_b32 s%d, s%d, 14" % (sT0, sWM))
        a("v_add_u32 v%d, s%d, v%d\nv_xor_b32 v%d, 64, v%d" % (vXr, sT0, t2, vXr + 1, vXr))
        a("v_bfe_u32 v%d, v1, 2, 2" % t0)
        a("v_lshl_add_u32 v%d, v%d, 3, v%d" % (t2, t1, t0))
        a("v_mul_u32_u24 v%d, %d, v%d" % (t2, pitch, t2))
        a("v_and_b32 v%d, 3, v1\nv_lshl_add_u32 v%d, v%d, 3, v%d" % (t3, t2, t3, t2))
        a("v_add_u32 v%d, %d, v%d" % (t2, WB, t2))
        a("v_and_b32 v%d, 1, v%d" % (t1, t1))
        if ffn:
            a("s_lshl_b32 s%d, s%d, 8" % (sT0, sWN))
            a("v_lshlrev_b32 v%d, 5, v%d" % (t3, t1))
            a("v_add3_u32 v%d, v%d, v%d, s%d" % (vWr, t2, t3, sT0))
            a("v_sub_u32 v%d, v%d, v%d\nv_add_u32 v%d, s%d, v%d" % (t4, t2, t3, vWr + 1, sT0, t4))
            a("s_add_u32 s%d, s%d, 6" % (sT0, sWN))
            a("v_xor_b32 v%d, s%d, v%d\nv_lshl_add_u32 v%d, v%d, 5, v%d" % (t3, sT0, t1, vWr + 2, t3, t2))
        else:
            a("v_lshrrev_b32 v%d, 1, v%d\nv_lshl_or_b32 v%d, v%d, 1, v%d" % (t0, t0, t0, t1, t0))
            a("s_lshl_b32 s%d, s%d, 1" % (sT0, sWN))
            a("v_xor_b32 v%d, s%d, v%d" % (t0, sT0, t0))
            a("v_lshl_add_u32 v%d, v%d, 5, v%d" % (vWr, t0, t2))
            a("v_xor_b32 v%d, 1, v%d\nv_lshl_add_u32 v%d, v%d, 5, v%d" % (t0, t0, vWr + 1, t0, t2))

    def ffn(self):
        a = self.a
        a("s_waitcnt lgkmcnt(0)")
        srd(a, S_W, 84, 1024 * 3584 * 2)
        srd(a, S_M, 86, 3584 * 2)
        a("v_lshrrev_b32 v%d, 4, v1\nv_lshlrev_b32 v%d, 3, v%d" % (vT, vT, vT))
        a("s_mul_i32 s%d, s%d, 448" % (sT0, sCB))
        a("s_lshl_b32 s%d, s%d, 8\ns_add_u32 s%d, s%d, s%d" % (sT1, sWN, sT1, sT1, sT0))
        a("s_lshl_b32 s%d, s%d, 5\ns_add_u32 s%d, s%d, s%d" % (sT2, sWN, sT2, sT2, sT0))
        for j in range(7):
            a("buffer_load_dwordx2 %s, v%d, s[%d:%d], s%d offen offset:%d" % (vr(self.acc(True, 1, j), 2), vT, S_M, S_M + 3, sT1 if j < 6 else sT2, 32 * j))
        self.addr_setup(True)
        self.first_dmas(True)
        self.addr_reads(True)
        a("s_waitcnt vmcnt(30)")
        for j in range(7):
            s = self.acc(True, 1, j); d = self.acc(True, 0, j)
            a("v_lshlrev_b32 v%d, 16, v%d\nv_and_b32 v%d, 0xffff0000, v%d\nv_lshlrev_b32 v%d, 16, v%d\nv_and_b32 v%d, 0xffff0000, v%d" % (d, s, d + 1, s, d + 2, s + 1, d + 3, s + 1))
        for i in range(1, 8):
            for j in range(7):
                s = self.acc(True, 0, j); d = self.acc(True, i, j)
                a("v_mov_b64 %s, %s\nv_mov_b64 %s, %s" % (vr(d, 2), vr(s, 2), vr(d + 2, 2), vr(s + 2, 2)))
        self.mainloop(True)
        a("s_mov_b32 s%d, 0xbfb8aa3b\ns_mov_b32 s%d, 0x3fb504f3" % (sC0, sC1))
        a("s_lshl_b32 s%d, s%d, 12" % (sT0, sWN))
        a("v_lshl_add_u32 v2, v1, 4, s%d" % sT0)
        a("s_lshl_b32 s%d, s%d, 3\ns_add_u32 s%d, s%d, 3072" % (sT0, sWN, sT0, sT0))
        a("v_lshl_add_u32 v3, v1, 4, s%d" % sT0)
        a("s_lshl_b32 s%d, s%d, 1\ns_add_u32 s%d, s%d, s%d\ns_mul_i32 s%d, s%d, %d" % (sT0, sRB, sT0, sT0, sWM, sT0, sT0, 8 * RT_STRIDE))
        a("s_mul_i32 s%d, s%d, 7168\ns_add_u32 s%d, s%d, s%d" % (sT1, sCB, sT0, sT0, sT1))
        T = 16; N = 24
        def mish(hs, out):
            n = len(hs)
            for k, h in enumerate(hs): a("v_pk_fma_f32 %s, %s, s[%d:%d], 0.5 op_sel_hi:[1,0,0]" % (vr(T + 2 * k, 2), vr(h, 2), sC0, sC0 + 1))
            for k in range(2 * n): a("v_exp_f32 v%d, v%d" % (T + k, T + k))
            for k in range(n): a("v_pk_fma_f32 %s, %s, s[%d:%d], 1.0 op_sel_hi:[1,0,0]" % (vr(N + 2 * k, 2), vr(T + 2 * k, 2), sC1, sC1 + 1))
            for k in range(n): a("v_pk_fma_f32 %s, %s, %s, %s" % (vr(T + 2 * k, 2), vr(T + 2 * k, 2), vr(T + 2 * k, 2), vr(N + 2 * k, 2)))
            for k in range(2 * n): a("v_rcp_f32 v%d, v%d" % (T + k, T + k))
            for k in range(n): a("v_pk_mul_f32 %s, %s, %s clamp" % (vr(T + 2 * k, 2), vr(N + 2 * k, 2), vr(T + 2 * k, 2)))
            for k, h in enumerate(hs): a("v_pk_mul_f32 %s, %s, %s" % (vr(T + 2 * k, 2), vr(h, 2), vr(T + 2 * k, 2)))
            for k in range(n): a("v_cvt_pk_bf16_f32 v%d, v%d, v%d" % (out[k], T + 2 * k, T + 2 * k + 1))
        for i in range(8):
            for p in range(3):
                b = self.acc(True, i, 2 * p)
                mish([b, b + 2, b + 4, b + 6], [b, b + 1, b + 2, b + 3])
                a("buffer_store_dwordx4 %s, v2, s[%d:%d], s%d offen offset:%d" % (vr(b, 4), S_WS, S_WS + 3, sT0, 1024 * p))
            if i % 2 == 1:
                b0 = self.acc(True, i - 1, 6); b1 = self.acc(True, i, 6)
                mish([b0, b0 + 2, b1, b1 + 2], [b0, b0 + 1, b1, b1 + 1])
                a("buffer_store_dwordx2 %s, v3, s[%d:%d], s%d offen" % (vr(b0, 2), S_WS, S_WS + 3, sT1))
                a("buffer_store_dwordx2 %s, v3, s[%d:%d], s%d offen" % (vr(b1, 2), S_WS, S_WS + 3, sT0))
            if i < 7:
                a("s_mov_b32 s%d, s%d\ns_add_u32 s%d, s%d, %d" % (sT1, sT0, sT0, sT0, RT_STRIDE))
        self.stamp(3)
        if self.stamps:
            a("s_waitcnt vmcnt(0)"); self.stamp(4); self.dump_stamps(8)
        a("s_endpgm")

    def feature(self, P, s):
        T = 16 + 16 * s; E = T + 4; C = T + 12; D = T + 14
        WP = 48
        L = []; a = L.append
        for k in range(4): a("v_cvt_pk_bf16_f32 v%d, v%d, v%d" % (T + k, P + 2 * k, P + 2 * k + 1))
        for tf in range(2): a("v_mfma_f32_16x16x32_bf16 %s, %s, %s, 0" % (vr(P + 4 * tf, 4), vr(WP + 4 * tf, 4), vr(T, 4)))
        head = L; L = []; a = L.append
        a("v_max3_f32 v%d, v%d, v%d, v%d" % (C, P, P + 1, P + 2))
        a("v_max3_f32 v%d, -v%d, -v%d, -v%d" % (C + 1, P, P + 1, P + 2))
        a("v_max3_f32 v%d, v%d, v%d, v%d" % (C, C, P + 3, P + 4))
        a("v_max3_f32 v%d, v%d, -v%d, -v%d" % (C + 1, C + 1, P + 3, P + 4))
        a("v_max3_f32 v%d, v%d, v%d, v%d" % (C, C, P + 5, P + 6))
        a("v_max3_f32 v%d, v%d, -v%d, -v%d" % (C + 1, C + 1, P + 5, P + 6))
        a("v_max_f32 v%d, v%d, v%d" % (C, C, P + 7))
        a("v_max_f32_e64 v%d, v%d, -v%d" % (C + 1, C + 1, P + 7))
        def xl(op, mid):
            a("v_permlane32_swap_b32 v%d, v%d" % (C, C + 1))
            a("%s v%d, v%d, v%d" % (op, C, C, C + 1))
            a("v_mov_b32 v%d, v%d" % (C + 1, C))
            a("v_permlane16_swap_b32 v%d, v%d" % (C, C + 1))
            a("%s v%d, v%d, v%d" % (op, C, C, C + 1))
            a(mid)
            a("v_mov_b32 v%d, v%d" % (C + 1, C))
            a("v_permlane32_swap_b32 v%d, v%d" % (C, C + 1))
        xl("v_max_f32", "v_mul_f32 v%d, s%d, v%d" % (C, sC0, C))
        for k in range(4): a("v_pk_fma_f32 %s, %s, s[%d:%d], %s op_sel_hi:[1,0,0]" % (vr(E + 2 * k, 2), vr(P + 2 * k, 2), sC1, sC1 + 1, vr(C, 2)))
        for k in range(4): a("v_pk_fma_f32 %s, %s, s[%d:%d], %s op_sel:[0,0,1] op_sel_hi:[1,0,1]" % (vr(P + 2 * k, 2), vr(P + 2 * k, 2), sC0, sC0 + 1, vr(C, 2)))
        for k in range(8): a("v_exp_f32 v%d, v%d" % (E + k, E + k))
        for k in range(8): a("v_exp_f32 v%d, v%d" % (P + k, P + k))
        a("v_pk_add_f32 %s, %s, %s" % (vr(T, 2), vr(E, 2), vr(E + 2, 2)))
        a("v_pk_add_f32 %s, %s, %s" % (vr(T + 2, 2), vr(E + 4, 2), vr(E + 6, 2)))
        a("v_pk_add_f32 %s, %s, %s" % (vr(C, 2), vr(P, 2), vr(P + 2, 2)))
        a("v_pk_add_f32 %s, %s, %s" % (vr(D, 2), vr(P + 4, 2), vr(P + 6, 2)))
        a("v_pk_add_f32 %s, %s, %s" % (vr(T, 2), vr(T, 2), vr(T + 2, 2)))
        a("v_pk_add_f32 %s, %s, %s" % (vr(D, 2), vr(C, 2), vr(D, 2)))
        a("v_add_f32 v%d, v%d, v%d" % (C, T, T + 1))
        a("v_add_f32 v%d, v%d, v%d" % (C + 1, D, D + 1))
        xl("v_add_f32", "v_rcp_f32 v%d, v%d" % (C, C))
        for k in range(4): a("v_pk_mul_f32 %s, %s, %s op_sel:[0,1] op_sel_hi:[1,1]" % (vr(P + 2 * k, 2), vr(P + 2 * k, 2), vr(C, 2)))
        for k in range(4): a("v_pk_mul_f32 %s, %s, %s op_sel_hi:[1,0]" % (vr(E + 2 * k, 2), vr(E + 2 * k, 2), vr(C, 2)))
        for k in range(4): a("v_cvt_pk_bf16_f32 v%d, v%d, v%d" % (P + k, P + 2 * k, P + 2 * k + 1))
        for k in range(4): a("v_cvt_pk_bf16_f32 v%d, v%d, v%d" % (P + 4 + k, E + 2 * k, E + 2 * k + 1))
        return head, L

    def qkv(self):
        a = self.a
        acc = lambda i, j: self.acc(False, i, j)
        a("s_waitcnt lgkmcnt(0)")
        srd(a, S_W, 82, 1024 * 3072 * 2)
        srd(a, S_M, 88, 1024 * 2)
        srd(a, S_M2, 90, 32 * 32 * 32 * 2)
        a("v_lshlrev_b32 v%d, 5, v1" % vT)
        a("s_lshl_b32 s%d, s%d, 4\ns_add_u32 s%d, s%d, s%d\ns_lshl_b32 s%d, s%d, 2\ns_add_u32 s%d, s%d, s%d" % (sT0, sRB, sT0, sT0, sCB, sT0, sT0, sT0, sT0, sWV))
        a("s_lshl_b32 s81, s%d, 4" % sT0)
        a("s_lshl_b32 s%d, s%d, 13\ns_add_u32 s%d, s%d, 4096" % (sT0, sT0, sT1, sT0))
        for h in range(2): a("buffer_load_dwordx4 %s, v%d, s[%d:%d], 0 offen offset:%d" % (vr(64 + 4 * h, 4), vT, S_M, S_M + 3, 16 * h))
        for r in range(4):
            for h in range(2): a("buffer_load_dwordx4 %s, v%d, s[%d:%d], s%d offen offset:%d" % (vr(72 + 8 * r + 4 * h, 4), vT, S_X, S_X + 3, sT0 if r < 2 else sT1, 2048 * (r & 1) + 16 * h))
        a("s_lshl_b32 s%d, s%d, 1\ns_add_u32 s%d, s%d, s%d" % (sEx + 2, sCB, sEx + 2, sEx + 2, sWN))
        a("s_lshl_b32 s%d, s%d, 11" % (sT0, sEx + 2))
        a("s_lshl_b32 s%d, s%d, 11\ns_add_u32 s%d, s%d, %d" % (sEx + 3, sWV, sEx + 3, sEx + 3, PHI))
        a("s_mov_b32 m0, s%d" % (sEx + 3))
        a("v_lshlrev_b32 v%d, 4, v1" % (vT + 1))
        for h in range(2): a("buffer_load_dwordx4 v%d, s[%d:%d], s%d offen offset:%d lds" % (vT + 1, S_M2, S_M2 + 3, sT0, 1024 * h))
        self.addr_setup(False)
        self.first_dmas(False)
        self.addr_reads(False)
        a("s_mov_b32 s%d, 0xbfb8aa3b\ns_mov_b32 s%d, 0x3fb8aa3b" % (sC0, sC1))
        a("s_waitcnt vmcnt(28)")
        a("v_lshrrev_b32 v%d, 2, v1\nv_lshlrev_b32 v%d, 6, v%d\nv_and_b32 v%d, 3, v1\nv_lshl_add_u32 v%d, v%d, 3, v%d\nv_add_u32 v%d, s%d, v%d" % (vT, vT, vT, vT + 1, vT, vT + 1, vT, vT, sEx + 3, vT))
        for tf in range(2):
            for h in range(2): a("ds_read_b64_tr_b16 %s, v%d offset:%d" % (vr(48 + 4 * tf + 2 * h, 2), vT, 32 * tf + 1024 * h))
        for r in range(4): a("v_mov_b32 v%d, 0" % (vT + 2 + r))
        for k in range(8):
            for r in range(4): a("v_dot2c_f32_bf16 v%d, v%d, v%d" % (vT + 2 + r, 72 + 8 * r + k, 64 + k))
        g0 = vT + 2
        a("v_permlane32_swap_b32 v%d, v%d\nv_permlane32_swap_b32 v%d, v%d" % (g0, g0 + 2, g0 + 1, g0 + 3))
        a("v_add_f32 v%d, v%d, v%d\nv_add_f32 v%d, v%d, v%d" % (g0, g0, g0 + 2, g0 + 1, g0 + 1, g0 + 3))
        a("v_permlane16_swap_b32 v%d, v%d\nv_add_f32 v%d, v%d, v%d" % (g0, g0 + 1, g0, g0, g0 + 1))
        for m in ("quad_perm:[1,0,3,2]", "quad_perm:[2,3,0,1]", "row_half_mirror", "row_mirror"):
            a("v_add_f32_dpp v%d, v%d, v%d %s row_mask:0xf bank_mask:0xf" % (g0, g0, g0, m))
        a("v_mul_f32 v%d, s%d, v%d\nv_exp_f32 v%d, v%d\nv_add_f32 v%d, 1.0, v%d\nv_rcp_f32 v%d, v%d" % (g0, sC0, g0, g0, g0, g0, g0, g0, g0))
        a("v_lshrrev_b32 v%d, 4, v1\nv_lshlrev_b32 v%d, 2, v%d" % (g0 + 1, g0 + 1, g0 + 1))
        a("s_add_u32 s81, s81, 0x%x" % G_OFF)
        a("v_mov_b32 v56, v%d\nv_mov_b32 v57, v%d" % (g0, g0 + 1))
        a("s_mul_i32 s%d, s%d, 0x80008000" % (sT0, sWM))
        a("s_waitcnt lgkmcnt(0)")
        for k in range(8): a("v_xor_b32 v%d, s%d, v%d" % (48 + k, sT0, 48 + k))
        t0, t1, t2 = vT, vT + 1, vT + 2
        a("v_and_b32 v%d, 15, v1\nv_lshrrev_b32 v%d, 4, v1\nv_lshlrev_b32 v%d, 2, v%d\nv_sub_u32 v%d, v%d, v%d" % (t0, t1, t1, t1, t0, t0, t1))
        a("v_mov_b32 v%d, 0" % (t2 + 1))
        for rr in range(2):
            a("v_mov_b32 v%d, 0x3f80\nv_cmp_eq_u32 vcc, %d, v%d\nv_cndmask_b32 v%d, 0, v%d, vcc" % (t1, 2 * rr, t0, t2, t1))
            a("v_mov_b32 v%d, 0x3f800000\nv_cmp_eq_u32 vcc, %d, v%d\nv_cndmask_b32 v%d, v%d, v%d, vcc" % (t1, 2 * rr + 1, t0, t2, t2, t1))
            a("v_accvgpr_write_b32 a%d, v%d\nv_accvgpr_write_b32 a%d, v%d" % (128 + rr, t2, 134 + rr, t2))
            a("v_accvgpr_write_b32 a%d, v%d\nv_accvgpr_write_b32 a%d, v%d" % (130 + rr, t2 + 1, 132 + rr, t2 + 1))
        a("v_mov_b32 v%d, 0x3f803f80" % t1)
        for k in range(4): a("v_accvgpr_write_b32 a%d, v%d" % (136 + k, t1))
        for r in range(64, 256, 2): a("v_mov_b64 %s, 0" % vr(r, 2))
        self.mainloop(False)
        a("buffer_store_dword v56, v57, s[%d:%d], s81 offen" % (S_WS, S_WS + 3))
        KV = 140
        kv = lambda sg, tf, c: KV + ((sg * 2 + tf) * 3 + c) * 4
        V = 56
        for p in range(4):
            i0, i1 = 2 * p, 2 * p + 1
            h0, b0 = self.feature(acc(i0, 2), 0); h1, b1 = self.feature(acc(i1, 2), 1)
            a.extend(h0 + h1)
            for td in range(2):
                for s, i in enumerate((i0, i1)):
                    for k in range(2): a("v_cvt_pk_bf16_f32 v%d, v%d, v%d" % (V + 4 * td + 2 * s + k, acc(i, 4 + td) + 2 * k, acc(i, 4 + td) + 2 * k + 1))
            a.extend(zipmerge(b0, b1))
            tt = lambda s, i, sg, tf: (16 + 16 * s + 4 + 4 * tf) if sg == 0 else acc(i, 4) + 4 * tf
            for sg in (1, 0):
                for s, i in enumerate((i0, i1)):
                    for tf in range(2):
                        a("v_mfma_f32_16x16x32_bf16 %s, %s, %s, 0" % (vr(tt(s, i, sg, tf), 4), vr(acc(i, 2) + 4 * (1 - sg), 4), ar(128 + 4 * tf, 4)))
            G = lambda sg, tf: acc((i0, i1)[sg], 2) + 4 * tf
            for sg in (1, 0):
                for tf in range(2):
                    for s, i in enumerate((i0, i1)):
                        for k in range(2): a("v_cvt_pk_bf16_f32 v%d, v%d, v%d" % (G(sg, tf) + 2 * s + k, tt(s, i, sg, tf) + 2 * k, tt(s, i, sg, tf) + 2 * k + 1))
            for sg in (1, 0):
                for tf in range(2):
                    for c in range(3):
                        d = ar(kv(sg, tf, c), 4)
                        a("v_mfma_f32_16x16x32_bf16 %s, %s, %s, %s" % (d, vr(G(sg, tf), 4), vr(V + 4 * c, 4) if c < 2 else ar(136, 4), "0" if p == 0 else d))
        self.stamp(3)
        a("s_mul_i32 s%d, s%d, 6144\nv_lshl_add_u32 v2, v1, 4, s%d" % (sT0, sWV, sT0))
        a("s_xor_b32 s%d, s%d, 2\ns_mul_i32 s%d, s%d, 6144\nv_lshl_add_u32 v3, v1, 4, s%d" % (sT0, sWV, sT0, sT0, sT0))
        for n in range(6): a("ds_write_b128 v2, %s offset:%d" % (ar(kv(1, 0, 0) + 4 * n, 4), 1024 * n))
        R = acc(0, 2)
        own = lambda n: acc(n // 4, 2) + 4 * (n % 4)
        oth = lambda n: acc(2 + n // 4, 2) + 4 * (n % 4)
        for n in range(6):
            for k in range(4): a("v_accvgpr_read_b32 v%d, a%d" % (own(n) + k, kv(0, 0, 0) + 4 * n + k))
        a("s_waitcnt lgkmcnt(0)\ns_barrier")
        for n in range(6): a("ds_read_b128 %s, v3 offset:%d" % (vr(oth(n), 4), 1024 * n))
        a("s_lshl_b32 s%d, s%d, 1\ns_add_u32 s%d, s%d, s%d" % (sT0, sEx + 2, sT0, sT0, sWM))
        a("s_lshl_b32 s92, s%d, 15\ns_add_u32 s92, s92, 0x%x" % (sT0, KVP_OFF))
        a("s_lshl_b32 s93, s%d, 10\ns_add_u32 s93, s93, 0x%x" % (sT0, ZP_OFF))
        a("s_lshl_b32 s%d, s%d, 12\ns_add_u32 s%d, s%d, s92" % (sT0, sRB, sT0, sT0))
        a("s_lshl_b32 s%d, s%d, 7\ns_add_u32 s%d, s%d, s93" % (sT1, sRB, sT1, sT1))
        a("v_lshlrev_b32 v4, 4, v1")
        a("v_and_b32 v5, 48, v1")
        a("s_waitcnt lgkmcnt(0)")
        for n in range(6):
            for k in range(2): a("v_pk_add_f32 %s, %s, %s" % (vr(own(n) + 2 * k, 2), vr(own(n) + 2 * k, 2), vr(oth(n) + 2 * k, 2)))
        for tf in range(2):
            for td in range(2): a("buffer_store_dwordx4 %s, v4, s[%d:%d], s%d offen offset:%d sc1" % (vr(own(3 * tf + td), 4), S_WS, S_WS + 3, sT0, 1024 * (2 * tf + td)))
        a("s_mov_b32 s94, 0x00010001\ns_mov_b32 s95, 0x00010001\ns_mov_b64 exec, s[94:95]")
        for tf in range(2): a("buffer_store_dwordx4 %s, v5, s[%d:%d], s%d offen offset:%d sc1" % (vr(own(3 * tf + 2), 4), S_WS, S_WS + 3, sT1, 64 * tf))
        a("s_mov_b64 exec, -1")
        def qfeat(p):
            h0, b0 = self.feature(acc(2 * p, 0), 0); h1, b1 = self.feature(acc(2 * p + 1, 0), 1)
            a.extend(h0 + h1); a.extend(zipmerge(b0, b1))
        qfeat(0); qfeat(1)
        a("s_waitcnt vmcnt(0)\ns_barrier")
        a("s_lshl_b32 s%d, s%d, 4\nv_mov_b32 v6, s%d\nv_mov_b32 v7, 1" % (sT0, sCB, sT0))
        a("s_cmp_lg_u32 s%d, 0\ns_cbranch_scc1 L_k1_nosig" % sWV)
        a("s_mov_b64 exec, 1\nglobal_atomic_add v6, v7, s[%d:%d] sc1\ns_mov_b64 exec, -1" % (S_DBG, S_DBG + 1))
        a("L_k1_nosig:")
        qfeat(2); qfeat(3)
        self.stamp(4)
        a("s_cmp_lg_u32 s%d, 0\ns_cbranch_scc1 L_k1_nopoll" % sWV)
        a("s_mov_b32 s%d, 0" % sT1)
        a("L_k1_poll:")
        a("global_load_dword v7, v6, s[%d:%d] sc1\ns_waitcnt vmcnt(0)\nv_readfirstlane_b32 s%d, v7\ns_add_u32 s%d, s%d, 1\ns_cmp_ge_u32 s%d, 8\ns_cbranch_scc1 L_k1_nopoll\ns_cmp_lt_u32 s%d, 0x80000\ns_cbranch_scc1 L_k1_poll" % (S_DBG, S_DBG + 1, sT0, sT1, sT1, sT0, sT1))
        a("L_k1_nopoll:")
        a("s_barrier")
        self.stamp(5)
        a("v_and_b32 v6, 7, v1\nv_lshlrev_b32 v6, 7, v6\nv_and_b32 v7, 8, v1\nv_lshl_add_u32 v6, v7, 3, v6\nv_add_u32 v6, v6, v5")
        a("buffer_load_dwordx4 v[16:19], v6, s[%d:%d], s93 offen sc1" % (S_WS, S_WS + 3))
        for p in range(8):
            for n in range(4): a("buffer_load_dwordx4 %s, v4, s[%d:%d], s92 offen offset:%d sc1" % (vr(acc(p, 2) + 4 * n, 4), S_WS, S_WS + 3, 1024 * n))
            if p < 7: a("s_add_u32 s92, s92, 4096")
        a("s_waitcnt vmcnt(32)")
        for m in ("quad_perm:[1,0,3,2]", "quad_perm:[2,3,0,1]", "row_half_mirror"):
            for k in range(4): a("v_add_f32_dpp v%d, v%d, v%d %s row_mask:0xf bank_mask:0xf" % (16 + k, 16 + k, 16 + k, m))
        F = 20
        a("v_cvt_pk_bf16_f32 v16, v16, v17\nv_cvt_pk_bf16_f32 v17, v18, v19")
        a("v_mov_b32 v28, v16\nv_mov_b32 v29, v17\nv_mov_b32 v30, v16\nv_mov_b32 v31, v17")
        a("v_mov_b32_dpp v28, v16 row_ror:8 row_mask:0xf bank_mask:0xc\nv_mov_b32_dpp v29, v17 row_ror:8 row_mask:0xf bank_mask:0xc")
        a("v_mov_b32_dpp v30, v16 row_ror:8 row_mask:0xf bank_mask:0x3\nv_mov_b32_dpp v31, v17 row_ror:8 row_mask:0xf bank_mask:0x3")
        for p in range(1, 8):
            a("s_waitcnt vmcnt(%d)" % (4 * (7 - p)))
            for k in range(8): a("v_pk_add_f32 %s, %s, %s" % (vr(R + 2 * k, 2), vr(R + 2 * k, 2), vr(acc(p, 2) + 2 * k, 2)))
        for tf in range(2):
            for td in range(2):
                for k in range(2): a("v_cvt_pk_bf16_f32 v%d, v%d, v%d" % (F + 4 * td + 2 * tf + k, R + 4 * (2 * tf + td) + 2 * k, R + 4 * (2 * tf + td) + 2 * k + 1))
        for n in range(3): a("ds_write_b128 v2, %s offset:%d" % (vr(F + 4 * n, 4), 1024 * n))
        a("s_waitcnt lgkmcnt(0)\ns_barrier")
        for n in range(3): a("ds_read_b128 %s, v3 offset:%d" % (vr(F + 12 + 4 * n, 4), 1024 * n))
        self.stamp(6)
        a("s_lshl_b32 s%d, s%d, 1\ns_add_u32 s%d, s%d, s%d\ns_mul_i32 s%d, s%d, %d" % (sT0, sRB, sT0, sT0, sWM, sT0, sT0, 8 * RT_STRIDE))
        a("s_add_u32 s%d, s%d, 112\ns_lshl_b32 s%d, s%d, 10\ns_add_u32 s%d, s%d, s%d" % (sT1, sEx + 2, sT1, sT1, sT0, sT0, sT1))
        a("s_mov_b32 s%d, 0x358637bd" % sT2)
        a("s_waitcnt lgkmcnt(0)")
        for i in range(8):
            for c in (2, 0, 1):
                d = vr(acc(i, 2) + 4 * c, 4)
                a("v_mfma_f32_16x16x32_bf16 %s, %s, %s, 0" % (d, vr(F + 4 * c, 4), vr(acc(i, 0) + 4, 4)))
                a("v_mfma_f32_16x16x32_bf16 %s, %s, %s, %s" % (d, vr(F + 12 + 4 * c, 4), vr(acc(i, 0), 4), d))
        for i in range(8):
            dn = acc(i, 2) + 8
            a("v_add_f32 v%d, s%d, v%d" % (dn, sT2, dn))
        for i in range(8):
            dn = acc(i, 2) + 8
            a("v_rcp_f32 v%d, v%d" % (dn, dn))
        for i in range(8):
            dn = acc(i, 2) + 8; b = acc(i, 2)
            for k in range(4): a("v_pk_mul_f32 %s, %s, %s op_sel_hi:[1,0]" % (vr(b + 2 * k, 2), vr(b + 2 * k, 2), vr(dn, 2)))
            for k in range(4): a("v_cvt_pk_bf16_f32 v%d, v%d, v%d" % (b + k, b + 2 * k, b + 2 * k + 1))
            a("buffer_store_dwordx4 %s, v4, s[%d:%d], s%d offen" % (vr(b, 4), S_WS, S_WS + 3, sT0))
            if i < 7: a("s_add_u32 s%d, s%d, %d" % (sT0, sT0, RT_STRIDE))
        if self.stamps:
            a("s_waitcnt vmcnt(0)"); self.stamp(7); self.dump_stamps(8)
        a("s_endpgm")

    def build(self):
        a = self.a
        a("s_cmp_ge_u32 s2, 256\ns_cbranch_scc1 L_k1_exit")
        if self.stamps: a("s_memrealtime s[80:81]\ns_waitcnt lgkmcnt(0)")
        self.stamp(0)
        a("s_load_dwordx2 s[96:97], s[0:1], 0")
        a("s_load_dwordx2 s[82:83], s[0:1], 8")
        a("s_load_dwordx2 s[90:91], s[0:1], 16")
        a("s_load_dwordx4 s[84:87], s[0:1], 40")
        a("s_load_dwordx2 s[88:89], s[0:1], 64")
        a("s_load_dwordx2 s[%d:%d], s[0:1], 80" % (S_DBG, S_DBG + 1))
        a("s_load_dwordx2 s[98:99], s[0:1], 88")
        a("v_lshrrev_b32 v2, 6, v0\nv_and_b32 v1, 63, v0\nv_readfirstlane_b32 s%d, v2" % sWV)
        a("s_lshr_b32 s%d, s2, 3\ns_and_b32 s%d, s%d, 7" % (sT0, sRB, sT0))
        a("s_and_b32 s%d, s2, 7\ns_lshl_b32 s%d, s%d, 1\ns_bfe_u32 s%d, s2, 0x10006\ns_add_u32 s%d, s%d, s%d" % (sCB, sCB, sCB, sT0, sCB, sCB, sT0))
        a("s_lshr_b32 s%d, s%d, 1\ns_and_b32 s%d, s%d, 1" % (sWM, sWV, sWN, sWV))
        t0, t1, t2 = vT, vT + 1, vT + 2
        a("s_lshl_b32 s%d, s%d, 2\ns_add_u32 s%d, s%d, s%d\ns_lshl_b32 s%d, s%d, 17" % (sT0, sRB, sT0, sT0, sWV, sT0, sT0))
        a("v_lshrrev_b32 v%d, 3, v1\nv_lshlrev_b32 v%d, 11, v%d" % (t0, t0, t0))
        a("v_lshrrev_b32 v%d, 4, v1\nv_and_b32 v%d, 7, v1\nv_xor_b32 v%d, v%d, v%d" % (t1, t2, t1, t1, t2))
        a("v_lshlrev_b32 v%d, 4, v%d\nv_add3_u32 v%d, v%d, v%d, s%d" % (t1, t1, vXd, t0, t1, sT0))
        a("v_xor_b32 v%d, 64, v%d" % (t1, vXd))
        a("v_add_u32 v%d, %d, v%d" % (vXd + 1, 16384 - 1024, t1))
        a("v_add_u32 v%d, %d, v%d" % (vXd + 2, 32768 - 2048, vXd))
        a("v_add_u32 v%d, %d, v%d" % (vXd + 3, 49152 - 3072, t1))
        a("s_lshl_b32 s%d, s%d, 13\ns_add_u32 s%d, s%d, 4096" % (sWX0, sWV, sWX1, sWX0))
        a("s_waitcnt lgkmcnt(0)")
        srd(a, S_X, 96, 2048 * 1024 * 2)
        srd(a, S_WS, 98, WS_USED)
        a("s_cmp_ge_u32 s2, 128\ns_cbranch_scc1 L_k1_qkv")
        self.ffn()
        a("L_k1_qkv:")
        self.qkv()
        a("L_k1_exit:\ns_endpgm")
        return a.text(verbose=True)
```

```python
from asmlib import *
from k1 import srd, A2_OFF, G_OFF, ST_OFF, WS_USED, RT_STRIDE

S_WS, S_B, S_O = 4, 8, 12
sRB, sCB, sWV = 16, 17, 18
sA, sA1, sB, sCnt = 19, 20, 21, 22
sT0, sT1 = 23, 24
sLb = 25
sST = 56
D = 4
NS = D + 2
RING = 8
LDS2 = RING * 8192

class K2:
    def __init__(self, name, stamps=False, opt=None):
        self.name = name; self.stamps = stamps; self.a = Asm(); self.opt = opt or {}
    def stamp(self, k):
        if self.stamps: self.a("s_memtime s[%d:%d]" % (sST + 2 * k, sST + 2 * k + 1))
    def dump_stamps(self, n):
        if not self.stamps: return
        a = self.a
        a("s_memrealtime s[%d:%d]" % (sST + 2 * n, sST + 2 * n + 1))
        a("s_waitcnt lgkmcnt(0)")
        a("s_lshl_b32 s%d, s2, 2\ns_add_u32 s%d, s%d, s%d\ns_lshl_b32 s%d, s%d, 6\ns_add_u32 s%d, s%d, 0x%x" % (sT0, sT0, sT0, sWV, sT0, sT0, sT0, sT0, ST_OFF + 0x10000))
        a("v_mov_b32 v1, 0")
        for k in range(n + 1):
            a("v_mov_b32 v2, s%d" % (sST + 2 * k))
            a("buffer_store_dword v2, v1, s[%d:%d], s%d offen offset:%d" % (S_WS, S_WS + 3, sT0, 4 * k))
        a("v_mov_b32 v2, s80")
        a("buffer_store_dword v2, v1, s[%d:%d], s%d offen offset:%d" % (S_WS, S_WS + 3, sT0, 60))
    def loads(self, u):
        L = []
        L.append("s_add_u32 m0, s%d, %d" % (sLb, u * 8192))
        for r in range(2):
            for kk in range(2):
                L.append("buffer_load_dwordx4 %s, v2, s[%d:%d], s%d offen offset:%d" % (ar(16 * u + 8 * kk + 4 * r, 4), S_WS, S_WS + 3, sA if r == 0 else sA1, 1024 * kk))
            L.append("buffer_load_dwordx4 v%d, s[%d:%d], s%d offen offset:%d lds" % (3 + r, S_B, S_B + 3, sB, 1024 * r))
        L.append("s_add_u32 s%d, s%d, 2048\ns_add_u32 s%d, s%d, 2048\ns_add_u32 s%d, s%d, 0x20000" % (sA, sA, sA1, sA1, sB, sB))
        return L
    def breads(self, u, st):
        L = []
        for kk in range(2):
            for j in range(4):
                for h in range(2):
                    L.append("ds_read_b64_tr_b16 %s, v%d offset:%d" % (ar(128 + 32 * st + 16 * kk + 4 * j + 2 * h, 2), 5 + j, u * 8192 + (32 * kk + 16 * h) * 128))
        return L
    def mf(self, u, st, accb):
        L = []
        for kk in range(2):
            for j in range(4):
                for r in range(2):
                    d = vr(accb + (r * 4 + j) * 4, 4)
                    L.append("v_mfma_f32_16x16x32_bf16 %s, %s, %s, %s" % (d, ar(128 + 32 * st + 16 * kk + 4 * j, 4), ar(16 * u + 8 * kk + 4 * r, 4), d))
        return L
    def step(self, u, accb, load=True, vm=None, nextread=True):
        a = self.a
        DEP = self.dep
        if nextread:
            a("s_waitcnt vmcnt(%d) lgkmcnt(0)" % (6 * (DEP - 2) if vm is None else vm))
            a("s_barrier")
        else:
            a("s_waitcnt lgkmcnt(0)")
        items = []
        if nextread: items += [(n, t) for n, t in enumerate(self.breads((u + 1) % RING, (u + 1) & 1))]
        if load:
            ld = self.loads((u + DEP) % RING)
            items += [(-1, ld[0])] + [(2 * n, t) for n, t in enumerate(ld[1:])]
        a.extend(place(self.mf(u, u & 1, accb), items))
    def build(self):
        a = self.a
        self.dep = DEP = self.opt.get("dep", 6)
        a("s_cmp_ge_u32 s2, 256\ns_cbranch_scc1 L_k2_exit")
        if self.stamps: a("s_memrealtime s[80:81]\ns_waitcnt lgkmcnt(0)")
        self.stamp(0)
        a("s_load_dwordx2 s[82:83], s[0:1], 24")
        a("s_load_dwordx2 s[84:85], s[0:1], 56")
        a("s_load_dwordx2 s[86:87], s[0:1], 72")
        a("s_load_dwordx2 s[88:89], s[0:1], 88")
        a("v_lshrrev_b32 v2, 6, v0\nv_and_b32 v1, 63, v0\nv_readfirstlane_b32 s%d, v2" % sWV)
        a("s_bfe_u32 s%d, s2, 0x20001\ns_lshl_b32 s%d, s%d, 2\ns_lshr_b32 s%d, s2, 6\ns_add_u32 s%d, s%d, s%d" % (sRB, sRB, sRB, sT0, sRB, sRB, sT0))
        a("s_and_b32 s%d, s2, 1\ns_lshl_b32 s%d, s%d, 3\ns_bfe_u32 s%d, s2, 0x30003\ns_add_u32 s%d, s%d, s%d" % (sCB, sCB, sCB, sT0, sCB, sCB, sT0))
        a("v_lshlrev_b32 v2, 4, v1")
        a("s_lshl_b32 s%d, s%d, 2\ns_add_u32 s%d, s%d, s%d" % (sT1, sRB, sT1, sT1, sWV))
        a("s_mul_i32 s%d, s%d, %d\ns_add_u32 s%d, s%d, %d" % (sA, sT1, 2 * RT_STRIDE, sA1, sA, RT_STRIDE))
        a("v_lshrrev_b32 v12, 3, v1\nv_and_b32 v13, 6, v12\nv_and_b32 v14, 7, v1\nv_xor_b32 v13, v13, v14")
        a("v_lshlrev_b32 v13, 4, v13\nv_lshl_add_u32 v13, v12, 11, v13")
        a("s_lshl_b32 s%d, s%d, 15\ns_lshl_b32 s%d, s%d, 7\ns_add_u32 s%d, s%d, s%d" % (sT0, sWV, sB, sCB, sT0, sT0, sB))
        a("v_add_u32 v3, s%d, v13\nv_add_u32 v4, %d, v3" % (sT0, 16384 - 1024))
        a("s_lshl_b32 s%d, s%d, 11\ns_mov_b32 s%d, 0" % (sLb, sWV, sB))
        a("v_lshrrev_b32 v12, 2, v1\nv_and_b32 v13, 3, v1\nv_lshlrev_b32 v13, 3, v13\nv_lshl_add_u32 v13, v12, 7, v13")
        a("v_bfe_u32 v12, v1, 3, 2")
        for j in range(4): a("v_xor_b32 v14, %d, v12\nv_lshl_add_u32 v%d, v14, 5, v13" % (j, 5 + j))
        a("s_waitcnt lgkmcnt(0)")
        srd(a, S_WS, 88, WS_USED); srd(a, S_B, 84, 3584 * 2048); srd(a, S_O, 86, 2048 * 2048)
        a("v_and_b32 v12, 15, v1\nv_lshlrev_b32 v12, 2, v12")
        a("s_lshl_b32 s%d, s%d, 7\ns_add_u32 s%d, s%d, 0x%x" % (sT0, sT1, sT0, sT0, G_OFF))
        a("buffer_load_dword v10, v12, s[%d:%d], s%d offen\nbuffer_load_dword v11, v12, s[%d:%d], s%d offen offset:64" % (S_WS, S_WS + 3, sT0, S_WS, S_WS + 3, sT0))
        for u in range(DEP): a.extend(self.loads(u))
        for r in range(32, 96, 2): a("v_mov_b64 %s, 0" % vr(r, 2))
        a("s_mov_b32 s%d, 0" % sCnt)
        a("s_waitcnt vmcnt(%d)\ns_barrier" % (6 * (DEP - 1)))
        self.stamp(1)
        a.extend(self.breads(0, 0))
        a(".p2align 6\nL_k2_loop:")
        for u in range(8):
            if u == 8 - DEP:
                a("s_cmp_eq_u32 s%d, 6" % sCnt)
                a("s_cselect_b32 s%d, s82, s%d\ns_cselect_b32 s%d, s83, s%d\ns_cselect_b32 s%d, 0x200000, s%d\ns_cselect_b32 s%d, 0, s%d" % (S_B, S_B, S_B + 1, S_B + 1, S_B + 2, S_B + 2, sB, sB))
            self.step(u, 32)
        a("s_add_u32 s%d, s%d, 1\ns_cmp_lt_u32 s%d, 7\ns_cbranch_scc1 L_k2_loop" % (sCnt, sCnt, sCnt))
        self.stamp(2)
        for t in range(16):
            rem = 15 - t
            ld = rem >= DEP
            vm = None if rem >= DEP - 1 else 6 * (rem - 1)
            self.step(t % 8, 64, load=ld, vm=vm, nextread=rem > 0)
        self.stamp(3)
        a("v_and_b32 v12, 15, v1\nv_lshlrev_b32 v12, 11, v12")
        a("v_bfe_u32 v13, v1, 4, 1\nv_lshl_add_u32 v12, v13, 5, v12\nv_lshrrev_b32 v13, 5, v1\nv_lshl_add_u32 v12, v13, 4, v12")
        a("s_lshl_b32 s%d, s%d, 16\ns_lshl_b32 s%d, s%d, 7\ns_add_u32 s%d, s%d, s%d\ns_add_u32 s%d, s%d, 0x8000" % (sT1, sT1, sT0, sCB, sT0, sT0, sT1, sT1, sT0))
        for r in range(2):
            for k in range(8):
                f = 32 + 16 * r + 2 * k; o = f + 32
                a("v_pk_add_f32 %s, %s, %s neg_lo:[0,1] neg_hi:[0,1]" % (vr(o, 2), vr(o, 2), vr(f, 2)))
            for k in range(8):
                f = 32 + 16 * r + 2 * k; o = f + 32
                a("v_pk_fma_f32 %s, %s, v[10:11], %s op_sel:[0,%d,0] op_sel_hi:[1,%d,1]" % (vr(o, 2), vr(o, 2), vr(f, 2), r, r))
            for k in range(8):
                o = 64 + 16 * r
                a("v_cvt_pk_bf16_f32 v%d, v%d, v%d" % (32 + 16 * r + k, o + 2 * k, o + 2 * k + 1))
            for p in range(2):
                b = 32 + 16 * r + 4 * p
                a("v_permlane16_swap_b32 v%d, v%d\nv_permlane16_swap_b32 v%d, v%d" % (b, b + 2, b + 1, b + 3))
            for p in range(2):
                b = 32 + 16 * r + 4 * p
                a("buffer_store_dwordx4 %s, v12, s[%d:%d], s%d offen offset:%d" % (vr(b, 4), S_O, S_O + 3, sT0 if r == 0 else sT1, 64 * p))
        if self.stamps:
            a("s_waitcnt vmcnt(0)"); self.stamp(4); self.dump_stamps(8)
        a("L_k2_exit:\ns_endpgm")
        return a.text(verbose=True)
```

```python
import sys, json
from asmlib import *
import k1, k2
NAME = "gated_mix__linear_kernel_hedgehog__dense_activation_mish__prompt"
def header():
    ref = open("cdna_kernels/%s.s.ref" % NAME).read().split("\n")
    return "\n".join(l for l in ref if l.startswith(";") and "@launch" not in l and "Override launch" not in l and "grid=ceil" not in l)
def generate(stamps=False, o1=None, o2=None):
    K1 = k1.K1("hh_k1_kernel", stamps, o1); K2 = k2.K2("hh_k2_kernel", stamps, o2)
    s = header() + "\n"
    s += "; @launch kernel=hh_k1_kernel grid=(256,1,1) block=(256,1,1) lds=%d\n" % k1.LDS1
    s += "; @launch kernel=hh_k2_kernel grid=(256,1,1) block=(256,1,1) lds=%d\n" % k2.LDS2
    s += '.amdgcn_target "amdgcn-amd-amdhsa--gfx950"\n.text\n'
    for K in (K1, K2):
        s += ".globl %s\n.p2align 8\n.type %s,@function\n%s:\n" % (K.name, K.name, K.name)
        s += K.build()
    s += '.section .rodata,"a"\n.p2align 6\n' + kdesc("hh_k1_kernel", 448, 256) + ".p2align 6\n" + kdesc("hh_k2_kernel", 288, 96)
    return s
if __name__ == "__main__":
    out = sys.argv[1] if len(sys.argv) > 1 else "cdna_kernels/%s.s" % NAME
    stamps = len(sys.argv) > 2 and sys.argv[2] == "stamps"
    o1 = json.loads(sys.argv[3]) if len(sys.argv) > 3 else None
    o2 = json.loads(sys.argv[4]) if len(sys.argv) > 4 else None
    open(out, "w").write(generate(stamps, o1, o2))
```

```python
from asmlib import *

A2_OFF = 0
G_OFF = 0x1200000
KVP_OFF = 0x1210000
ZP_OFF = 0x1410000
ST_OFF = 0x1500000
WS_USED = 0x1600000
RT_STRIDE = 144 * 1024

XB = 0
WB = 98304
PHI = 155648
LDS1 = 163840

S_X, S_W, S_WS, S_M, S_M2 = 4, 8, 12, 16, 20
S_DBG = 24
sRB, sCB, sWV, sWM, sWN = 26, 27, 28, 29, 30
sX, sX2, sW = 31, 32, 33
sCur, sPrev, sDx, sWb, sDw, sCnt = 34, 35, 36, 37, 38, 39
sWX0, sWX1, sWW0, sWW1 = 40, 41, 42, 43
sT0, sT1, sT2 = 44, 45, 46
sC0, sC1 = 48, 50
sNew = 47
sEx = 52
sST = 56
vXd = 2
vWd = 6
vXr = 13
vWr = 15
vT = 18
vPF, vPD = 30, 31
sPF = 53

def srd(a, d, lo, size):
    a("s_mov_b32 s%d, s%d\ns_mov_b32 s%d, s%d\ns_mov_b32 s%d, 0x%x\ns_mov_b32 s%d, 0x20000" % (d, lo, d + 1, lo + 1, d + 2, size, d + 3))

class K1:
    def __init__(self, name, stamps=False, opt=None):
        self.name = name; self.stamps = stamps; self.a = Asm(); self.opt = opt or {}
    def stamp(self, k):
        if self.stamps: self.a("s_memtime s[%d:%d]" % (sST + 2 * k, sST + 2 * k + 1))
    def dump_stamps(self, n):
        if not self.stamps: return
        a = self.a
        a("s_memrealtime s[%d:%d]" % (sST + 2 * n, sST + 2 * n + 1))
        a("s_waitcnt lgkmcnt(0)")
        a("s_lshl_b32 s%d, s2, 2\ns_add_u32 s%d, s%d, s%d\ns_lshl_b32 s%d, s%d, 6\ns_add_u32 s%d, s%d, 0x%x" % (sT0, sT0, sT0, sWV, sT0, sT0, sT0, sT0, ST_OFF))
        a("v_mov_b32 v1, 0")
        for k in range(n + 1):
            a("v_mov_b32 v2, s%d" % (sST + 2 * k))
            a("buffer_store_dword v2, v1, s[%d:%d], s%d offen offset:%d" % (S_WS, S_WS + 3, sT0, 4 * k))
        a("v_mov_b32 v2, s80")
        a("buffer_store_dword v2, v1, s[%d:%d], s%d offen offset:%d" % (S_WS, S_WS + 3, sT0, 60))

    def dma_x(self):
        L = []
        for q in range(8):
            pre = ""
            if q % 4 == 0: pre = "s_add_u32 m0, s%d, s%d\n" % (sPrev, sWX0 if q == 0 else sWX1)
            L.append((pre, "buffer_load_dwordx4 v%d, s[%d:%d], s%d offen offset:%d lds" % (vXd + q % 4, S_X, S_X + 3, sX if q < 4 else sX2, (q % 4) * 1024)))
        return L
    def dma_w(self, n):
        L = []
        for m in range(n):
            pre = ""
            if m % 4 == 0: pre = "s_add_u32 m0, s%d, s%d\n" % (sWb, sWW0 if m == 0 else sWW1)
            L.append((pre, "buffer_load_dwordx4 v%d, s[%d:%d], s%d offen offset:%d lds" % (vWd + m, S_W, S_W + 3, sW, (m % 4) * 1024)))
        return L
    def reads(self, ffn, kk, st):
        xb = 64 * st; wb = 64 * st + 32
        pitch = 448 if ffn else 384
        X = ["ds_read_b128 %s, v%d offset:%d" % (ar(xb + 4 * i, 4), vXr + kk, i * 2048) for i in range(8)]
        W = []
        for j in range(7 if ffn else 6):
            if ffn:
                base = vWr + (2 if j == 6 else j & 1); off = 0 if j == 6 else 32 * j
            else:
                base = vWr + (j & 1); off = 128 * (j >> 1)
            for h in range(2):
                W.append("ds_read_b64_tr_b16 %s, v%d offset:%d" % (ar(wb + 4 * j + 2 * h, 2), base, off + (4 * h + 32 * kk) * pitch))
        return W[:2] + X + W[2:]
    def acc(self, ffn, i, j):
        return 32 + (i * 7 + j) * 4 if ffn else 64 + (i * 6 + j) * 4
    def mfmas(self, ffn, st):
        xb = 64 * st; wb = 64 * st + 32
        L = []
        for j in range(7 if ffn else 6):
            for i in range(8):
                d = vr(self.acc(ffn, i, j), 4); x = ar(xb + 4 * i, 4); w = ar(wb + 4 * j, 4)
                if ffn or j < 4: L.append("v_mfma_f32_16x16x32_bf16 %s, %s, %s, %s" % (d, w, x, d))
                else: L.append("v_mfma_f32_16x16x32_bf16 %s, %s, %s, %s" % (d, x, w, d))
        return L
    def step(self, ffn, dma=True, last=False, vm=8):
        a = self.a
        nw = 7 if ffn else 6
        pitch = 448 if ffn else 384
        rstride = 7168 if ffn else 6144
        nwr = 3 if ffn else 2
        d0 = self.opt.get("dma_start", 1); de = self.opt.get("dma_every", 6 if ffn else 5)
        items = [(2 * n, t) for n, t in enumerate(self.reads(ffn, 1, 1))]
        if dma:
            for n, (pre, t) in enumerate(self.dma_x()):
                if pre: items.append((d0 + de * n - 1, pre))
                items.append((d0 + de * n, t))
            e = d0 + de * 7 + 1
            items += [(e, "s_add_u32 s%d, s%d, 128" % (sX, sX)), (e + 1, "s_add_u32 s%d, s%d, 128" % (sX2, sX2))]
        if not last:
            items += [(3, "s_add_u32 s%d, s%d, 0x8000" % (sNew, sCur)), (3, "s_cmp_eq_u32 s%d, 0x18000" % sNew), (3, "s_cselect_b32 s%d, 0, s%d" % (sNew, sNew)),
                      (5, "s_sub_u32 s%d, s%d, s%d" % (sDx, sNew, sCur)), (9, "v_add_u32 v%d, s%d, v%d" % (vXr, sDx, vXr))]
            n0 = 8 * nw - 4
            for k in range(nwr): items.append((n0 + k, "v_add_u32 v%d, s%d, v%d" % (vWr + k, sDw, vWr + k)))
        a.extend(place(self.mfmas(ffn, 0), items))
        if last: a("s_waitcnt lgkmcnt(0)")
        else: a("s_waitcnt vmcnt(%d) lgkmcnt(0)" % vm)
        a("s_barrier")
        items = []
        if not last:
            items = [(2 * n, t) for n, t in enumerate(self.reads(ffn, 0, 0))]
            items += [(9, "v_add_u32 v%d, s%d, v%d" % (vXr + 1, sDx, vXr + 1)), (11, "s_mov_b32 s%d, s%d" % (sPrev, sCur)), (11, "s_mov_b32 s%d, s%d" % (sCur, sNew))]
        if dma:
            for n, (pre, t) in enumerate(self.dma_w(nw)):
                if pre: items.append((d0 + de * n - 1, pre))
                items.append((d0 + de * n, t))
            e = d0 + de * (nw - 1) + 1
            items += [(e, "s_add_u32 s%d, s%d, %d" % (sW, sW, 64 * rstride))]
            if self.opt.get("pf", 1):
                items += [(e + 3, "buffer_load_dword v%d, v%d, s[%d:%d], s%d offen" % (vPD, vPF, S_M, S_M + 3, sPF)), (e + 4, "s_add_u32 s%d, s%d, 0x%x" % (sPF, sPF, 0x40000 if ffn else 0x80000))]
        if not last:
            e = 8 * nw - 5
            items += [(e, "s_add_u32 s%d, s%d, s%d" % (sWb, sWb, sDw)), (e + 1, "s_sub_u32 s%d, 0, s%d" % (sDw, sDw))]
        if dma:
            items += [(8 * nw - 3, "s_add_u32 s%d, s%d, 1" % (sCnt, sCnt)), (8 * nw - 2, "s_cmp_lt_u32 s%d, 14" % sCnt)]
        a.extend(place(self.mfmas(ffn, 1), items))
        if not last: a("s_waitcnt lgkmcnt(0)")
    def mainloop(self, ffn):
        a = self.a; tag = "F" if ffn else "Q"
        nw = 7 if ffn else 6
        if ffn: srd(a, S_M, 92, 1024 * 2048)
        else: srd(a, S_M, 94, 3584 * 2048)
        a("s_and_b32 s%d, s2, 127\ns_lshl_b32 s%d, s%d, 2\ns_add_u32 s%d, s%d, s%d\ns_lshl_b32 s%d, s%d, %d" % (sPF, sPF, sPF, sPF, sPF, sWV, sPF, sPF, 9 if ffn else 10))
        a("v_lshlrev_b32 v%d, %d, v1" % (vPF, 3 if ffn else 4))
        a("s_waitcnt vmcnt(%d)" % (8 + nw))
        a("s_barrier")
        self.stamp(1)
        a.extend(self.reads(ffn, 0, 0))
        a("s_waitcnt lgkmcnt(0)")
        a(".p2align 6")
        a("L_k1_loop%s:" % tag)
        self.step(ffn, vm=self.opt.get("vm", 8))
        a("s_cbranch_scc1 L_k1_loop%s" % tag)
        self.step(ffn, dma=False, vm=0)
        self.step(ffn, dma=False, last=True)
        self.stamp(2)
    def first_dmas(self, ffn):
        a = self.a
        nw = 7 if ffn else 6; pitch = 448 if ffn else 384; rstride = 7168 if ffn else 6144
        a("s_mov_b32 s%d, 0\ns_mov_b32 s%d, 0x10000\ns_mov_b32 s%d, 0" % (sX, sX2, sW))
        a("s_mov_b32 s%d, 0\ns_mov_b32 s%d, %d" % (sPrev, sWb, WB))
        for t in range(2):
            for pre, x in self.dma_x(): a(pre + x)
            for pre, x in self.dma_w(nw): a(pre + x)
            a("s_add_u32 s%d, s%d, 128\ns_add_u32 s%d, s%d, 128\ns_add_u32 s%d, s%d, %d" % (sX, sX, sX2, sX2, sW, sW, 64 * rstride))
            if t == 0: a("s_mov_b32 s%d, 0x8000\ns_mov_b32 s%d, %d" % (sPrev, sWb, WB + 64 * pitch))
        a("s_mov_b32 s%d, 0x10000\ns_mov_b32 s%d, 0\ns_mov_b32 s%d, %d\ns_mov_b32 s%d, %d\ns_mov_b32 s%d, 0" % (sPrev, sCur, sWb, WB, sDw, 64 * pitch, sCnt))
    def addr_setup(self, ffn):
        a = self.a
        nw = 7 if ffn else 6; pitch = 448 if ffn else 384; rstride = 7168 if ffn else 6144
        nch = 28 if ffn else 24; magic = 2341 if ffn else 2731
        t0, t1, t2, t3, t4 = vT, vT + 1, vT + 2, vT + 3, vT + 4
        a("s_mul_i32 s%d, s%d, %d" % (sT0, sWV, 16 * rstride))
        a("s_mul_i32 s%d, s%d, %d" % (sT1, sCB, 448 if ffn else 128))
        a("s_add_u32 s%d, s%d, s%d" % (sT0, sT0, sT1))
        for m in range(nw):
            a("v_add_u32 v%d, %d, v1" % (t0, 64 * m))
            a("v_mul_u32_u24 v%d, %d, v%d" % (t1, magic, t0))
            a("v_lshrrev_b32 v%d, 16, v%d" % (t1, t1))
            a("v_mul_u32_u24 v%d, %d, v%d" % (t2, nch, t1))
            a("v_sub_u32 v%d, v%d, v%d" % (t0, t0, t2))
            if ffn:
                a("v_lshrrev_b32 v%d, 2, v%d\nv_and_b32 v%d, 2, v%d" % (t2, t1, t2, t2))
                a("v_xor_b32 v%d, v%d, v%d" % (t0, t0, t2))
                a("v_lshlrev_b32 v%d, 4, v%d" % (t0, t0))
            else:
                a("v_lshrrev_b32 v%d, 1, v%d\nv_and_b32 v%d, 4, v%d" % (t2, t1, t2, t2))
                a("v_and_b32 v%d, 2, v%d" % (t3, t1))
                a("v_or_b32 v%d, v%d, v%d" % (t2, t2, t3))
                a("v_xor_b32 v%d, v%d, v%d" % (t0, t0, t2))
                a("v_lshrrev_b32 v%d, 3, v%d\nv_lshlrev_b32 v%d, 11, v%d" % (t2, t0, t2, t2))
                a("v_and_b32 v%d, 7, v%d" % (t0, t0))
                a("v_lshl_add_u32 v%d, v%d, 4, v%d" % (t0, t0, t2))
            a("v_mul_u32_u24 v%d, %d, v%d" % (t1, rstride, t1))
            a("v_add3_u32 v%d, v%d, v%d, s%d" % (vWd + m, t0, t1, sT0))
            if m % 4: a("v_subrev_u32 v%d, %d, v%d" % (vWd + m, (m % 4) * 1024, vWd + m))
        a("s_mul_i32 s%d, s%d, %d\ns_add_u32 s%d, s%d, 4096" % (sWW0, sWV, 16 * pitch, sWW1, sWW0))
    def addr_reads(self, ffn):
        a = self.a
        pitch = 448 if ffn else 384
        t0, t1, t2, t3, t4 = vT, vT + 1, vT + 2, vT + 3, vT + 4
        a("v_and_b32 v%d, 15, v1\nv_lshrrev_b32 v%d, 4, v1" % (t0, t1))
        a("v_lshrrev_b32 v%d, 1, v%d\nv_xor_b32 v%d, v%d, v%d" % (t2, t0, t2, t2, t1))
        a("v_lshlrev_b32 v%d, 4, v%d\nv_lshl_add_u32 v%d, v%d, 7, v%d" % (t2, t2, t2, t0, t2))
        a("s_lshl_b32 s%d, s%d, 14" % (sT0, sWM))
        a("v_add_u32 v%d, s%d, v%d\nv_xor_b32 v%d, 64, v%d" % (vXr, sT0, t2, vXr + 1, vXr))
        a("v_bfe_u32 v%d, v1, 2, 2" % t0)
        a("v_lshl_add_u32 v%d, v%d, 3, v%d" % (t2, t1, t0))
        a("v_mul_u32_u24 v%d, %d, v%d" % (t2, pitch, t2))
        a("v_and_b32 v%d, 3, v1\nv_lshl_add_u32 v%d, v%d, 3, v%d" % (t3, t2, t3, t2))
        a("v_add_u32 v%d, %d, v%d" % (t2, WB, t2))
        a("v_and_b32 v%d, 1, v%d" % (t1, t1))
        if ffn:
            a("s_lshl_b32 s%d, s%d, 8" % (sT0, sWN))
            a("v_lshlrev_b32 v%d, 5, v%d" % (t3, t1))
            a("v_add3_u32 v%d, v%d, v%d, s%d" % (vWr, t2, t3, sT0))
            a("v_sub_u32 v%d, v%d, v%d\nv_add_u32 v%d, s%d, v%d" % (t4, t2, t3, vWr + 1, sT0, t4))
            a("s_add_u32 s%d, s%d, 6" % (sT0, sWN))
            a("v_xor_b32 v%d, s%d, v%d\nv_lshl_add_u32 v%d, v%d, 5, v%d" % (t3, sT0, t1, vWr + 2, t3, t2))
        else:
            a("v_lshrrev_b32 v%d, 1, v%d\nv_lshl_or_b32 v%d, v%d, 1, v%d" % (t0, t0, t0, t1, t0))
            a("s_lshl_b32 s%d, s%d, 1" % (sT0, sWN))
            a("v_xor_b32 v%d, s%d, v%d" % (t0, sT0, t0))
            a("v_lshl_add_u32 v%d, v%d, 5, v%d" % (vWr, t0, t2))
            a("v_xor_b32 v%d, 1, v%d\nv_lshl_add_u32 v%d, v%d, 5, v%d" % (t0, t0, vWr + 1, t0, t2))

    def ffn(self):
        a = self.a
        a("s_waitcnt lgkmcnt(0)")
        srd(a, S_W, 84, 1024 * 3584 * 2)
        srd(a, S_M, 86, 3584 * 2)
        a("v_lshrrev_b32 v%d, 4, v1\nv_lshlrev_b32 v%d, 3, v%d" % (vT, vT, vT))
        a("s_mul_i32 s%d, s%d, 448" % (sT0, sCB))
        a("s_lshl_b32 s%d, s%d, 8\ns_add_u32 s%d, s%d, s%d" % (sT1, sWN, sT1, sT1, sT0))
        a("s_lshl_b32 s%d, s%d, 5\ns_add_u32 s%d, s%d, s%d" % (sT2, sWN, sT2, sT2, sT0))
        for j in range(7):
            a("buffer_load_dwordx2 %s, v%d, s[%d:%d], s%d offen offset:%d" % (vr(self.acc(True, 1, j), 2), vT, S_M, S_M + 3, sT1 if j < 6 else sT2, 32 * j))
        self.addr_setup(True)
        self.first_dmas(True)
        self.addr_reads(True)
        a("s_waitcnt vmcnt(30)")
        for j in range(7):
            s = self.acc(True, 1, j); d = self.acc(True, 0, j)
            a("v_lshlrev_b32 v%d, 16, v%d\nv_and_b32 v%d, 0xffff0000, v%d\nv_lshlrev_b32 v%d, 16, v%d\nv_and_b32 v%d, 0xffff0000, v%d" % (d, s, d + 1, s, d + 2, s + 1, d + 3, s + 1))
        for i in range(1, 8):
            for j in range(7):
                s = self.acc(True, 0, j); d = self.acc(True, i, j)
                a("v_mov_b64 %s, %s\nv_mov_b64 %s, %s" % (vr(d, 2), vr(s, 2), vr(d + 2, 2), vr(s + 2, 2)))
        self.mainloop(True)
        a("s_mov_b32 s%d, 0xbfb8aa3b\ns_mov_b32 s%d, 0x3fb504f3" % (sC0, sC1))
        a("s_lshl_b32 s%d, s%d, 12" % (sT0, sWN))
        a("v_lshl_add_u32 v2, v1, 4, s%d" % sT0)
        a("s_lshl_b32 s%d, s%d, 3\ns_add_u32 s%d, s%d, 3072" % (sT0, sWN, sT0, sT0))
        a("v_lshl_add_u32 v3, v1, 4, s%d" % sT0)
        a("s_lshl_b32 s%d, s%d, 1\ns_add_u32 s%d, s%d, s%d\ns_mul_i32 s%d, s%d, %d" % (sT0, sRB, sT0, sT0, sWM, sT0, sT0, 8 * RT_STRIDE))
        a("s_mul_i32 s%d, s%d, 7168\ns_add_u32 s%d, s%d, s%d" % (sT1, sCB, sT0, sT0, sT1))
        T = 16; N = 24
        def mish(hs, out):
            n = len(hs)
            for k, h in enumerate(hs): a("v_pk_fma_f32 %s, %s, s[%d:%d], 0.5 op_sel_hi:[1,0,0]" % (vr(T + 2 * k, 2), vr(h, 2), sC0, sC0 + 1))
            for k in range(2 * n): a("v_exp_f32 v%d, v%d" % (T + k, T + k))
            for k in range(n): a("v_pk_fma_f32 %s, %s, s[%d:%d], 1.0 op_sel_hi:[1,0,0]" % (vr(N + 2 * k, 2), vr(T + 2 * k, 2), sC1, sC1 + 1))
            for k in range(n): a("v_pk_fma_f32 %s, %s, %s, %s" % (vr(T + 2 * k, 2), vr(T + 2 * k, 2), vr(T + 2 * k, 2), vr(N + 2 * k, 2)))
            for k in range(2 * n): a("v_rcp_f32 v%d, v%d" % (T + k, T + k))
            for k in range(n): a("v_pk_mul_f32 %s, %s, %s clamp" % (vr(T + 2 * k, 2), vr(N + 2 * k, 2), vr(T + 2 * k, 2)))
            for k, h in enumerate(hs): a("v_pk_mul_f32 %s, %s, %s" % (vr(T + 2 * k, 2), vr(h, 2), vr(T + 2 * k, 2)))
            for k in range(n): a("v_cvt_pk_bf16_f32 v%d, v%d, v%d" % (out[k], T + 2 * k, T + 2 * k + 1))
        for i in range(8):
            for p in range(3):
                b = self.acc(True, i, 2 * p)
                mish([b, b + 2, b + 4, b + 6], [b, b + 1, b + 2, b + 3])
                a("buffer_store_dwordx4 %s, v2, s[%d:%d], s%d offen offset:%d" % (vr(b, 4), S_WS, S_WS + 3, sT0, 1024 * p))
            if i % 2 == 1:
                b0 = self.acc(True, i - 1, 6); b1 = self.acc(True, i, 6)
                mish([b0, b0 + 2, b1, b1 + 2], [b0, b0 + 1, b1, b1 + 1])
                a("buffer_store_dwordx2 %s, v3, s[%d:%d], s%d offen" % (vr(b0, 2), S_WS, S_WS + 3, sT1))
                a("buffer_store_dwordx2 %s, v3, s[%d:%d], s%d offen" % (vr(b1, 2), S_WS, S_WS + 3, sT0))
            if i < 7:
                a("s_mov_b32 s%d, s%d\ns_add_u32 s%d, s%d, %d" % (sT1, sT0, sT0, sT0, RT_STRIDE))
        self.stamp(3)
        if self.stamps:
            a("s_waitcnt vmcnt(0)"); self.stamp(4); self.dump_stamps(8)
        a("s_endpgm")

    def feature(self, P, s):
        T = 16 + 16 * s; E = T + 4; C = T + 12; D = T + 14
        WP = 48
        L = []; a = L.append
        for k in range(4): a("v_cvt_pk_bf16_f32 v%d, v%d, v%d" % (T + k, P + 2 * k, P + 2 * k + 1))
        for tf in range(2): a("v_mfma_f32_16x16x32_bf16 %s, %s, %s, 0" % (vr(P + 4 * tf, 4), vr(WP + 4 * tf, 4), vr(T, 4)))
        head = L; L = []; a = L.append
        a("v_max3_f32 v%d, v%d, v%d, v%d" % (C, P, P + 1, P + 2))
        a("v_max3_f32 v%d, -v%d, -v%d, -v%d" % (C + 1, P, P + 1, P + 2))
        a("v_max3_f32 v%d, v%d, v%d, v%d" % (C, C, P + 3, P + 4))
        a("v_max3_f32 v%d, v%d, -v%d, -v%d" % (C + 1, C + 1, P + 3, P + 4))
        a("v_max3_f32 v%d, v%d, v%d, v%d" % (C, C, P + 5, P + 6))
        a("v_max3_f32 v%d, v%d, -v%d, -v%d" % (C + 1, C + 1, P + 5, P + 6))
        a("v_max_f32 v%d, v%d, v%d" % (C, C, P + 7))
        a("v_max_f32_e64 v%d, v%d, -v%d" % (C + 1, C + 1, P + 7))
        def xl(op, mid):
            a("v_permlane32_swap_b32 v%d, v%d" % (C, C + 1))
            a("%s v%d, v%d, v%d" % (op, C, C, C + 1))
            a("v_mov_b32 v%d, v%d" % (C + 1, C))
            a("v_permlane16_swap_b32 v%d, v%d" % (C, C + 1))
            a("%s v%d, v%d, v%d" % (op, C, C, C + 1))
            a(mid)
            a("v_mov_b32 v%d, v%d" % (C + 1, C))
            a("v_permlane32_swap_b32 v%d, v%d" % (C, C + 1))
        xl("v_max_f32", "v_mul_f32 v%d, s%d, v%d" % (C, sC0, C))
        for k in range(4): a("v_pk_fma_f32 %s, %s, s[%d:%d], %s op_sel_hi:[1,0,0]" % (vr(E + 2 * k, 2), vr(P + 2 * k, 2), sC1, sC1 + 1, vr(C, 2)))
        for k in range(4): a("v_pk_fma_f32 %s, %s, s[%d:%d], %s op_sel:[0,0,1] op_sel_hi:[1,0,1]" % (vr(P + 2 * k, 2), vr(P + 2 * k, 2), sC0, sC0 + 1, vr(C, 2)))
        for k in range(8): a("v_exp_f32 v%d, v%d" % (E + k, E + k))
        for k in range(8): a("v_exp_f32 v%d, v%d" % (P + k, P + k))
        a("v_pk_add_f32 %s, %s, %s" % (vr(T, 2), vr(E, 2), vr(E + 2, 2)))
        a("v_pk_add_f32 %s, %s, %s" % (vr(T + 2, 2), vr(E + 4, 2), vr(E + 6, 2)))
        a("v_pk_add_f32 %s, %s, %s" % (vr(C, 2), vr(P, 2), vr(P + 2, 2)))
        a("v_pk_add_f32 %s, %s, %s" % (vr(D, 2), vr(P + 4, 2), vr(P + 6, 2)))
        a("v_pk_add_f32 %s, %s, %s" % (vr(T, 2), vr(T, 2), vr(T + 2, 2)))
        a("v_pk_add_f32 %s, %s, %s" % (vr(D, 2), vr(C, 2), vr(D, 2)))
        a("v_add_f32 v%d, v%d, v%d" % (C, T, T + 1))
        a("v_add_f32 v%d, v%d, v%d" % (C + 1, D, D + 1))
        xl("v_add_f32", "v_rcp_f32 v%d, v%d" % (C, C))
        for k in range(4): a("v_pk_mul_f32 %s, %s, %s op_sel:[0,1] op_sel_hi:[1,1]" % (vr(P + 2 * k, 2), vr(P + 2 * k, 2), vr(C, 2)))
        for k in range(4): a("v_pk_mul_f32 %s, %s, %s op_sel_hi:[1,0]" % (vr(E + 2 * k, 2), vr(E + 2 * k, 2), vr(C, 2)))
        for k in range(4): a("v_cvt_pk_bf16_f32 v%d, v%d, v%d" % (P + k, P + 2 * k, P + 2 * k + 1))
        for k in range(4): a("v_cvt_pk_bf16_f32 v%d, v%d, v%d" % (P + 4 + k, E + 2 * k, E + 2 * k + 1))
        return head, L

    def qkv(self):
        a = self.a
        acc = lambda i, j: self.acc(False, i, j)
        a("s_waitcnt lgkmcnt(0)")
        srd(a, S_W, 82, 1024 * 3072 * 2)
        srd(a, S_M, 88, 1024 * 2)
        srd(a, S_M2, 90, 32 * 32 * 32 * 2)
        a("v_lshlrev_b32 v%d, 5, v1" % vT)
        a("s_lshl_b32 s%d, s%d, 4\ns_add_u32 s%d, s%d, s%d\ns_lshl_b32 s%d, s%d, 2\ns_add_u32 s%d, s%d, s%d" % (sT0, sRB, sT0, sT0, sCB, sT0, sT0, sT0, sT0, sWV))
        a("s_lshl_b32 s81, s%d, 4" % sT0)
        a("s_lshl_b32 s%d, s%d, 13\ns_add_u32 s%d, s%d, 4096" % (sT0, sT0, sT1, sT0))
        for h in range(2): a("buffer_load_dwordx4 %s, v%d, s[%d:%d], 0 offen offset:%d" % (vr(64 + 4 * h, 4), vT, S_M, S_M + 3, 16 * h))
        for r in range(4):
            for h in range(2): a("buffer_load_dwordx4 %s, v%d, s[%d:%d], s%d offen offset:%d" % (vr(72 + 8 * r + 4 * h, 4), vT, S_X, S_X + 3, sT0 if r < 2 else sT1, 2048 * (r & 1) + 16 * h))
        a("s_lshl_b32 s%d, s%d, 1\ns_add_u32 s%d, s%d, s%d" % (sEx + 2, sCB, sEx + 2, sEx + 2, sWN))
        a("s_lshl_b32 s%d, s%d, 11" % (sT0, sEx + 2))
        a("s_lshl_b32 s%d, s%d, 11\ns_add_u32 s%d, s%d, %d" % (sEx + 3, sWV, sEx + 3, sEx + 3, PHI))
        a("s_mov_b32 m0, s%d" % (sEx + 3))
        a("v_lshlrev_b32 v%d, 4, v1" % (vT + 1))
        for h in range(2): a("buffer_load_dwordx4 v%d, s[%d:%d], s%d offen offset:%d lds" % (vT + 1, S_M2, S_M2 + 3, sT0, 1024 * h))
        self.addr_setup(False)
        self.first_dmas(False)
        self.addr_reads(False)
        a("s_mov_b32 s%d, 0xbfb8aa3b\ns_mov_b32 s%d, 0x3fb8aa3b" % (sC0, sC1))
        a("s_waitcnt vmcnt(28)")
        a("v_lshrrev_b32 v%d, 2, v1\nv_lshlrev_b32 v%d, 6, v%d\nv_and_b32 v%d, 3, v1\nv_lshl_add_u32 v%d, v%d, 3, v%d\nv_add_u32 v%d, s%d, v%d" % (vT, vT, vT, vT + 1, vT, vT + 1, vT, vT, sEx + 3, vT))
        for tf in range(2):
            for h in range(2): a("ds_read_b64_tr_b16 %s, v%d offset:%d" % (vr(48 + 4 * tf + 2 * h, 2), vT, 32 * tf + 1024 * h))
        for r in range(4): a("v_mov_b32 v%d, 0" % (vT + 2 + r))
        for k in range(8):
            for r in range(4): a("v_dot2c_f32_bf16 v%d, v%d, v%d" % (vT + 2 + r, 72 + 8 * r + k, 64 + k))
        g0 = vT + 2
        a("v_permlane32_swap_b32 v%d, v%d\nv_permlane32_swap_b32 v%d, v%d" % (g0, g0 + 2, g0 + 1, g0 + 3))
        a("v_add_f32 v%d, v%d, v%d\nv_add_f32 v%d, v%d, v%d" % (g0, g0, g0 + 2, g0 + 1, g0 + 1, g0 + 3))
        a("v_permlane16_swap_b32 v%d, v%d\nv_add_f32 v%d, v%d, v%d" % (g0, g0 + 1, g0, g0, g0 + 1))
        for m in ("quad_perm:[1,0,3,2]", "quad_perm:[2,3,0,1]", "row_half_mirror", "row_mirror"):
            a("v_add_f32_dpp v%d, v%d, v%d %s row_mask:0xf bank_mask:0xf" % (g0, g0, g0, m))
        a("v_mul_f32 v%d, s%d, v%d\nv_exp_f32 v%d, v%d\nv_add_f32 v%d, 1.0, v%d\nv_rcp_f32 v%d, v%d" % (g0, sC0, g0, g0, g0, g0, g0, g0, g0))
        a("v_lshrrev_b32 v%d, 4, v1\nv_lshlrev_b32 v%d, 2, v%d" % (g0 + 1, g0 + 1, g0 + 1))
        a("s_add_u32 s81, s81, 0x%x" % G_OFF)
        a("v_mov_b32 v56, v%d\nv_mov_b32 v57, v%d" % (g0, g0 + 1))
        a("s_mul_i32 s%d, s%d, 0x80008000" % (sT0, sWM))
        a("s_waitcnt lgkmcnt(0)")
        for k in range(8): a("v_xor_b32 v%d, s%d, v%d" % (48 + k, sT0, 48 + k))
        t0, t1, t2 = vT, vT + 1, vT + 2
        a("v_and_b32 v%d, 15, v1\nv_lshrrev_b32 v%d, 4, v1\nv_lshlrev_b32 v%d, 2, v%d\nv_sub_u32 v%d, v%d, v%d" % (t0, t1, t1, t1, t0, t0, t1))
        a("v_mov_b32 v%d, 0" % (t2 + 1))
        for rr in range(2):
            a("v_mov_b32 v%d, 0x3f80\nv_cmp_eq_u32 vcc, %d, v%d\nv_cndmask_b32 v%d, 0, v%d, vcc" % (t1, 2 * rr, t0, t2, t1))
            a("v_mov_b32 v%d, 0x3f800000\nv_cmp_eq_u32 vcc, %d, v%d\nv_cndmask_b32 v%d, v%d, v%d, vcc" % (t1, 2 * rr + 1, t0, t2, t2, t1))
            a("v_accvgpr_write_b32 a%d, v%d\nv_accvgpr_write_b32 a%d, v%d" % (128 + rr, t2, 134 + rr, t2))
            a("v_accvgpr_write_b32 a%d, v%d\nv_accvgpr_write_b32 a%d, v%d" % (130 + rr, t2 + 1, 132 + rr, t2 + 1))
        a("v_mov_b32 v%d, 0x3f803f80" % t1)
        for k in range(4): a("v_accvgpr_write_b32 a%d, v%d" % (136 + k, t1))
        for r in range(64, 256, 2): a("v_mov_b64 %s, 0" % vr(r, 2))
        self.mainloop(False)
        a("buffer_store_dword v56, v57, s[%d:%d], s81 offen" % (S_WS, S_WS + 3))
        KV = 140
        kv = lambda sg, tf, c: KV + ((sg * 2 + tf) * 3 + c) * 4
        V = 56
        for p in range(4):
            i0, i1 = 2 * p, 2 * p + 1
            h0, b0 = self.feature(acc(i0, 2), 0); h1, b1 = self.feature(acc(i1, 2), 1)
            a.extend(h0 + h1)
            for td in range(2):
                for s, i in enumerate((i0, i1)):
                    for k in range(2): a("v_cvt_pk_bf16_f32 v%d, v%d, v%d" % (V + 4 * td + 2 * s + k, acc(i, 4 + td) + 2 * k, acc(i, 4 + td) + 2 * k + 1))
            a.extend(zipmerge(b0, b1))
            tt = lambda s, i, sg, tf: (16 + 16 * s + 4 + 4 * tf) if sg == 0 else acc(i, 4) + 4 * tf
            for sg in (1, 0):
                for s, i in enumerate((i0, i1)):
                    for tf in range(2):
                        a("v_mfma_f32_16x16x32_bf16 %s, %s, %s, 0" % (vr(tt(s, i, sg, tf), 4), vr(acc(i, 2) + 4 * (1 - sg), 4), ar(128 + 4 * tf, 4)))
            G = lambda sg, tf: acc((i0, i1)[sg], 2) + 4 * tf
            for sg in (1, 0):
                for tf in range(2):
                    for s, i in enumerate((i0, i1)):
                        for k in range(2): a("v_cvt_pk_bf16_f32 v%d, v%d, v%d" % (G(sg, tf) + 2 * s + k, tt(s, i, sg, tf) + 2 * k, tt(s, i, sg, tf) + 2 * k + 1))
            for sg in (1, 0):
                for tf in range(2):
                    for c in range(3):
                        d = ar(kv(sg, tf, c), 4)
                        a("v_mfma_f32_16x16x32_bf16 %s, %s, %s, %s" % (d, vr(G(sg, tf), 4), vr(V + 4 * c, 4) if c < 2 else ar(136, 4), "0" if p == 0 else d))
        self.stamp(3)
        a("s_mul_i32 s%d, s%d, 6144\nv_lshl_add_u32 v2, v1, 4, s%d" % (sT0, sWV, sT0))
        a("s_xor_b32 s%d, s%d, 2\ns_mul_i32 s%d, s%d, 6144\nv_lshl_add_u32 v3, v1, 4, s%d" % (sT0, sWV, sT0, sT0, sT0))
        for n in range(6): a("ds_write_b128 v2, %s offset:%d" % (ar(kv(1, 0, 0) + 4 * n, 4), 1024 * n))
        R = acc(0, 2)
        own = lambda n: acc(n // 4, 2) + 4 * (n % 4)
        oth = lambda n: acc(2 + n // 4, 2) + 4 * (n % 4)
        for n in range(6):
            for k in range(4): a("v_accvgpr_read_b32 v%d, a%d" % (own(n) + k, kv(0, 0, 0) + 4 * n + k))
        a("s_waitcnt lgkmcnt(0)\ns_barrier")
        for n in range(6): a("ds_read_b128 %s, v3 offset:%d" % (vr(oth(n), 4), 1024 * n))
        a("s_lshl_b32 s%d, s%d, 1\ns_add_u32 s%d, s%d, s%d" % (sT0, sEx + 2, sT0, sT0, sWM))
        a("s_lshl_b32 s92, s%d, 15\ns_add_u32 s92, s92, 0x%x" % (sT0, KVP_OFF))
        a("s_lshl_b32 s93, s%d, 10\ns_add_u32 s93, s93, 0x%x" % (sT0, ZP_OFF))
        a("s_lshl_b32 s%d, s%d, 12\ns_add_u32 s%d, s%d, s92" % (sT0, sRB, sT0, sT0))
        a("s_lshl_b32 s%d, s%d, 7\ns_add_u32 s%d, s%d, s93" % (sT1, sRB, sT1, sT1))
        a("v_lshlrev_b32 v4, 4, v1")
        a("v_and_b32 v5, 48, v1")
        a("s_waitcnt lgkmcnt(0)")
        for n in range(6):
            for k in range(2): a("v_pk_add_f32 %s, %s, %s" % (vr(own(n) + 2 * k, 2), vr(own(n) + 2 * k, 2), vr(oth(n) + 2 * k, 2)))
        for tf in range(2):
            for td in range(2): a("buffer_store_dwordx4 %s, v4, s[%d:%d], s%d offen offset:%d sc1" % (vr(own(3 * tf + td), 4), S_WS, S_WS + 3, sT0, 1024 * (2 * tf + td)))
        a("s_mov_b32 s94, 0x00010001\ns_mov_b32 s95, 0x00010001\ns_mov_b64 exec, s[94:95]")
        for tf in range(2): a("buffer_store_dwordx4 %s, v5, s[%d:%d], s%d offen offset:%d sc1" % (vr(own(3 * tf + 2), 4), S_WS, S_WS + 3, sT1, 64 * tf))
        a("s_mov_b64 exec, -1")
        def qfeat(p):
            h0, b0 = self.feature(acc(2 * p, 0), 0); h1, b1 = self.feature(acc(2 * p + 1, 0), 1)
            a.extend(h0 + h1); a.extend(zipmerge(b0, b1))
        qfeat(0); qfeat(1)
        a("s_waitcnt vmcnt(0)\ns_barrier")
        a("s_lshl_b32 s%d, s%d, 4\nv_mov_b32 v6, s%d\nv_mov_b32 v7, 1" % (sT0, sCB, sT0))
        a("s_cmp_lg_u32 s%d, 0\ns_cbranch_scc1 L_k1_nosig" % sWV)
        a("s_mov_b64 exec, 1\nglobal_atomic_add v6, v7, s[%d:%d] sc1\ns_mov_b64 exec, -1" % (S_DBG, S_DBG + 1))
        a("L_k1_nosig:")
        qfeat(2); qfeat(3)
        self.stamp(4)
        a("s_cmp_lg_u32 s%d, 0\ns_cbranch_scc1 L_k1_nopoll" % sWV)
        a("s_mov_b32 s%d, 0" % sT1)
        a("L_k1_poll:")
        a("global_load_dword v7, v6, s[%d:%d] sc1\ns_waitcnt vmcnt(0)\nv_readfirstlane_b32 s%d, v7\ns_add_u32 s%d, s%d, 1\ns_cmp_ge_u32 s%d, 8\ns_cbranch_scc1 L_k1_nopoll\ns_cmp_lt_u32 s%d, 0x80000\ns_cbranch_scc1 L_k1_poll" % (S_DBG, S_DBG + 1, sT0, sT1, sT1, sT0, sT1))
        a("L_k1_nopoll:")
        a("s_barrier")
        self.stamp(5)
        a("v_and_b32 v6, 7, v1\nv_lshlrev_b32 v6, 7, v6\nv_and_b32 v7, 8, v1\nv_lshl_add_u32 v6, v7, 3, v6\nv_add_u32 v6, v6, v5")
        a("buffer_load_dwordx4 v[16:19], v6, s[%d:%d], s93 offen sc1" % (S_WS, S_WS + 3))
        for p in range(8):
            for n in range(4): a("buffer_load_dwordx4 %s, v4, s[%d:%d], s92 offen offset:%d sc1" % (vr(acc(p, 2) + 4 * n, 4), S_WS, S_WS + 3, 1024 * n))
            if p < 7: a("s_add_u32 s92, s92, 4096")
        a("s_waitcnt vmcnt(32)")
        for m in ("quad_perm:[1,0,3,2]", "quad_perm:[2,3,0,1]", "row_half_mirror"):
            for k in range(4): a("v_add_f32_dpp v%d, v%d, v%d %s row_mask:0xf bank_mask:0xf" % (16 + k, 16 + k, 16 + k, m))
        F = 20
        a("v_cvt_pk_bf16_f32 v16, v16, v17\nv_cvt_pk_bf16_f32 v17, v18, v19")
        a("v_mov_b32 v28, v16\nv_mov_b32 v29, v17\nv_mov_b32 v30, v16\nv_mov_b32 v31, v17")
        a("v_mov_b32_dpp v28, v16 row_ror:8 row_mask:0xf bank_mask:0xc\nv_mov_b32_dpp v29, v17 row_ror:8 row_mask:0xf bank_mask:0xc")
        a("v_mov_b32_dpp v30, v16 row_ror:8 row_mask:0xf bank_mask:0x3\nv_mov_b32_dpp v31, v17 row_ror:8 row_mask:0xf bank_mask:0x3")
        for p in range(1, 8):
            a("s_waitcnt vmcnt(%d)" % (4 * (7 - p)))
            for k in range(8): a("v_pk_add_f32 %s, %s, %s" % (vr(R + 2 * k, 2), vr(R + 2 * k, 2), vr(acc(p, 2) + 2 * k, 2)))
        for tf in range(2):
            for td in range(2):
                for k in range(2): a("v_cvt_pk_bf16_f32 v%d, v%d, v%d" % (F + 4 * td + 2 * tf + k, R + 4 * (2 * tf + td) + 2 * k, R + 4 * (2 * tf + td) + 2 * k + 1))
        for n in range(3): a("ds_write_b128 v2, %s offset:%d" % (vr(F + 4 * n, 4), 1024 * n))
        a("s_waitcnt lgkmcnt(0)\ns_barrier")
        for n in range(3): a("ds_read_b128 %s, v3 offset:%d" % (vr(F + 12 + 4 * n, 4), 1024 * n))
        self.stamp(6)
        a("s_lshl_b32 s%d, s%d, 1\ns_add_u32 s%d, s%d, s%d\ns_mul_i32 s%d, s%d, %d" % (sT0, sRB, sT0, sT0, sWM, sT0, sT0, 8 * RT_STRIDE))
        a("s_add_u32 s%d, s%d, 112\ns_lshl_b32 s%d, s%d, 10\ns_add_u32 s%d, s%d, s%d" % (sT1, sEx + 2, sT1, sT1, sT0, sT0, sT1))
        a("s_mov_b32 s%d, 0x358637bd" % sT2)
        a("s_waitcnt lgkmcnt(0)")
        for i in range(8):
            for c in (2, 0, 1):
                d = vr(acc(i, 2) + 4 * c, 4)
                a("v_mfma_f32_16x16x32_bf16 %s, %s, %s, 0" % (d, vr(F + 4 * c, 4), vr(acc(i, 0) + 4, 4)))
                a("v_mfma_f32_16x16x32_bf16 %s, %s, %s, %s" % (d, vr(F + 12 + 4 * c, 4), vr(acc(i, 0), 4), d))
        for i in range(8):
            dn = acc(i, 2) + 8
            a("v_add_f32 v%d, s%d, v%d" % (dn, sT2, dn))
        for i in range(8):
            dn = acc(i, 2) + 8
            a("v_rcp_f32 v%d, v%d" % (dn, dn))
        for i in range(8):
            dn = acc(i, 2) + 8; b = acc(i, 2)
            for k in range(4): a("v_pk_mul_f32 %s, %s, %s op_sel_hi:[1,0]" % (vr(b + 2 * k, 2), vr(b + 2 * k, 2), vr(dn, 2)))
            for k in range(4): a("v_cvt_pk_bf16_f32 v%d, v%d, v%d" % (b + k, b + 2 * k, b + 2 * k + 1))
            a("buffer_store_dwordx4 %s, v4, s[%d:%d], s%d offen" % (vr(b, 4), S_WS, S_WS + 3, sT0))
            if i < 7: a("s_add_u32 s%d, s%d, %d" % (sT0, sT0, RT_STRIDE))
        if self.stamps:
            a("s_waitcnt vmcnt(0)"); self.stamp(7); self.dump_stamps(8)
        a("s_endpgm")

    def build(self):
        a = self.a
        a("s_cmp_ge_u32 s2, 256\ns_cbranch_scc1 L_k1_exit")
        if self.stamps: a("s_memrealtime s[80:81]\ns_waitcnt lgkmcnt(0)")
        self.stamp(0)
        a("s_load_dwordx2 s[96:97], s[0:1], 0")
        a("s_load_dwordx2 s[82:83], s[0:1], 8")
        a("s_load_dwordx2 s[90:91], s[0:1], 16")
        a("s_load_dwordx4 s[84:87], s[0:1], 40")
        a("s_load_dwordx2 s[88:89], s[0:1], 64")
        a("s_load_dwordx2 s[92:93], s[0:1], 24")
        a("s_load_dwordx2 s[94:95], s[0:1], 56")
        a("s_load_dwordx2 s[%d:%d], s[0:1], 80" % (S_DBG, S_DBG + 1))
        a("s_load_dwordx2 s[98:99], s[0:1], 88")
        a("v_lshrrev_b32 v2, 6, v0\nv_and_b32 v1, 63, v0\nv_readfirstlane_b32 s%d, v2" % sWV)
        a("s_lshr_b32 s%d, s2, 3\ns_and_b32 s%d, s%d, 7" % (sT0, sRB, sT0))
        a("s_and_b32 s%d, s2, 7\ns_lshl_b32 s%d, s%d, 1\ns_bfe_u32 s%d, s2, 0x10006\ns_add_u32 s%d, s%d, s%d" % (sCB, sCB, sCB, sT0, sCB, sCB, sT0))
        a("s_lshr_b32 s%d, s%d, 1\ns_and_b32 s%d, s%d, 1" % (sWM, sWV, sWN, sWV))
        t0, t1, t2 = vT, vT + 1, vT + 2
        a("s_lshl_b32 s%d, s%d, 2\ns_add_u32 s%d, s%d, s%d\ns_lshl_b32 s%d, s%d, 17" % (sT0, sRB, sT0, sT0, sWV, sT0, sT0))
        a("v_lshrrev_b32 v%d, 3, v1\nv_lshlrev_b32 v%d, 11, v%d" % (t0, t0, t0))
        a("v_lshrrev_b32 v%d, 4, v1\nv_and_b32 v%d, 7, v1\nv_xor_b32 v%d, v%d, v%d" % (t1, t2, t1, t1, t2))
        a("v_lshlrev_b32 v%d, 4, v%d\nv_add3_u32 v%d, v%d, v%d, s%d" % (t1, t1, vXd, t0, t1, sT0))
        a("v_xor_b32 v%d, 64, v%d" % (t1, vXd))
        a("v_add_u32 v%d, %d, v%d" % (vXd + 1, 16384 - 1024, t1))
        a("v_add_u32 v%d, %d, v%d" % (vXd + 2, 32768 - 2048, vXd))
        a("v_add_u32 v%d, %d, v%d" % (vXd + 3, 49152 - 3072, t1))
        a("s_lshl_b32 s%d, s%d, 13\ns_add_u32 s%d, s%d, 4096" % (sWX0, sWV, sWX1, sWX0))
        a("s_waitcnt lgkmcnt(0)")
        srd(a, S_X, 96, 2048 * 1024 * 2)
        srd(a, S_WS, 98, WS_USED)
        a("s_cmp_ge_u32 s2, 128\ns_cbranch_scc1 L_k1_qkv")
        self.ffn()
        a("L_k1_qkv:")
        self.qkv()
        a("L_k1_exit:\ns_endpgm")
        return a.text(verbose=True)
```
